```python
import torch

def _softmax(x, axis=-1):
    return torch.softmax(x, dim=axis)

def _gelu(x):
    return torch.nn.functional.gelu(x, approximate='tanh')

def _silu(x):
    return torch.nn.functional.silu(x)

def _sigmoid(x):
    return torch.sigmoid(x)

def _layernorm(x, axis=-1, eps=1e-05):
    m = x.mean(dim=axis, keepdim=True)
    v = x.var(dim=axis, keepdim=True, unbiased=False)
    return (x - m) / torch.sqrt(v + eps)

def _scatter_add(tgt, idx, src, axis=0):
    return tgt.clone().index_add_(axis, idx, src)

def _segment_sum(src, seg, n):
    out = torch.zeros((n,) + src.shape[1:], dtype=src.dtype)
    return out.index_add_(0, seg, src)

def _pad(x, pw):
    flat = tuple((v for pair in reversed(pw) for v in pair))
    return torch.nn.functional.pad(x, flat)
kernel_name = 'parallel_sum__memory_aug_recurrent_mem_tr__moe_arch_mod__prompt'

def setup_inputs():

    _w = lambda a: (lambda t: t.to(torch.bfloat16) if t.is_floating_point() else t)(torch.as_tensor(a))

    def _A_setup():
        B, S, Dm = (1, 2048, 512)
        H, Dh = (32, 128)
        M, seg = (8, 32)
        seg = min(seg, S)
        S = S // seg * seg
        return {'x': _w((lambda *s: torch.randn(*s, dtype=torch.bfloat16) * 0.05)(B, S, Dm)), 'mem0': _w((lambda *s: torch.randn(*s, dtype=torch.bfloat16) * 1.6)(B, M, Dm)), 'Wq': _w((lambda *s: torch.randn(*s, dtype=torch.bfloat16) * 0.8)(Dm, H, Dh) * Dm ** (-0.5)), 'Wk': _w((lambda *s: torch.randn(*s, dtype=torch.bfloat16) * 0.8)(Dm, H, Dh) * Dm ** (-0.5)), 'Wv': _w((lambda *s: torch.randn(*s, dtype=torch.bfloat16) * 1.6)(Dm, H, Dh) * Dm ** (-0.5)), 'Wo': _w((lambda *s: torch.randn(*s, dtype=torch.bfloat16) * 1.6)(H, Dh, Dm) * (H * Dh) ** (-0.5)), 'seg_len': seg}
    _A_in = _A_setup()

    def _B_setup():
        B, S, D, F, C = (1, 2048, 512, 1792, 8)
        return {'x': _w((lambda *s: torch.randn(*s, dtype=torch.bfloat16) * 0.05)(B, S, D)), 'w_r': _w((lambda *s: torch.randn(*s, dtype=torch.bfloat16) * 0.05)(D)), 'w_gate': _w((lambda *s: torch.randn(*s, dtype=torch.bfloat16) * 0.05)(D, F)), 'w_up': _w((lambda *s: torch.randn(*s, dtype=torch.bfloat16) * 0.05)(D, F)), 'w_down': _w((lambda *s: torch.randn(*s, dtype=torch.bfloat16) * 0.05)(F, D))}
    _B_in = _B_setup()
    return {'A_x': _A_in['x'], 'A_mem0': _A_in['mem0'], 'A_Wq': _A_in['Wq'], 'A_Wk': _A_in['Wk'], 'A_Wv': _A_in['Wv'], 'A_Wo': _A_in['Wo'], 'A_seg_len': _A_in['seg_len'], 'B_x': _B_in['x'], 'B_w_r': _B_in['w_r'], 'B_w_gate': _B_in['w_gate'], 'B_w_up': _B_in['w_up'], 'B_w_down': _B_in['w_down']}

def reference(A_x, A_mem0, A_Wq, A_Wk, A_Wv, A_Wo, A_seg_len, B_x, B_w_r, B_w_gate, B_w_up, B_w_down):

    def _A_ref(x, mem0, Wq, Wk, Wv, Wo, seg_len):
        B, S, Dm = x.shape
        H, Dh = (Wq.shape[1], Wq.shape[2])
        M = mem0.shape[1]
        scale = Dh ** (-0.5)
        n_seg = S // seg_len
        L = M + seg_len
        idx = torch.arange(L)
        mask = (idx[:, None] < M) | (idx[:, None] >= idx[None, :])
        mem = mem0
        outs = []
        for s in range(n_seg):
            xs = x[:, s * seg_len:(s + 1) * seg_len, :].clone()
            h = torch.concatenate([mem, xs], axis=1)
            q = torch.einsum('btd,dhe->bhte', h, Wq)
            k = torch.einsum('btd,dhe->bhte', h, Wk)
            v = torch.einsum('btd,dhe->bhte', h, Wv)
            scores = torch.einsum('bhqe,bhke->bhqk', q, k) * scale
            scores = torch.where(mask[None, None], scores, -1000000000.0)
            p = _softmax(scores, axis=-1)
            o = torch.einsum('bhqk,bhke->bhqe', p, v)
            o = torch.einsum('bhte,hed->btd', o, Wo)
            mem = o[:, :M, :].clone()
            outs.append(o[:, M:, :])
        return torch.concatenate(outs, axis=1)

    def _B_ref(x, w_r, w_gate, w_up, w_down):
        B, S, D = x.shape
        C = 8
        r = x @ w_r
        idx = torch.argsort(-r, axis=-1)[:, :C]
        idx_e = (lambda x, n, axis: torch.repeat_interleave(x, n, dim=axis))(idx.reshape(B, C, 1), D, axis=2)
        x_sel = (lambda x, i, axis: torch.take_along_dim(x, i, dim=axis))(x, idx_e, axis=1)
        g = _silu(x_sel @ w_gate)
        u = x_sel @ w_up
        y = g * u @ w_down
        r_sel = _sigmoid((lambda x, i, axis: torch.take_along_dim(x, i, dim=axis))(r, idx, axis=1))
        y = y * r_sel.reshape(B, C, 1)
        b_off = (torch.arange(B) * S).reshape(B, 1)
        flat_idx = (idx + b_off).reshape(B * C)
        zero = (x * 0.0).reshape(B * S, D)
        upd = _scatter_add(zero, flat_idx, y.reshape(B * C, D), axis=0)
        return x + upd.reshape(B, S, D)
    x = A_x
    xn = _layernorm(x, axis=-1)
    return x + _A_ref(xn, A_mem0, A_Wq, A_Wk, A_Wv, A_Wo, A_seg_len) + _B_ref(xn, B_w_r, B_w_gate, B_w_up, B_w_down)
```

```python
NAME = "parallel_sum__memory_aug_recurrent_mem_tr__moe_arch_mod__prompt"

XN_OFF   = 0x0
R_OFF    = 0x200000
H_OFF    = 0x210000
UPD_OFF  = 0x220000
IDX_OFF  = 0x224000
MEMBUF_OFF = 0x240000
PART_OFF = 0x300000
FILL_BEG = 0x240000
FILL_END = 0x400000
WQP = 0x400000
WKP = 0x800000
WVP = 0xC00000
WOP = 0x1000000
WGP = 0x1400000
WUP = 0x1600000
WDP = 0x1800000
Q_OFF = 0x2000000
K_OFF = 0x3000000
VT_OFF = 0x4000000
KM_OFF = 0x5000000
VMT_OFF = 0x5400000
O_OFF = 0x6000000
WS_SIZE = 0x10000000

KA = dict(x=0, mem0=8, Wq=16, Wk=24, Wv=32, Wo=40, seg=48, Bx=56, wr=64, wg=72, wu=80, wd=88, out=96, dbg=104, ws=112)

class Asm:
    def __init__(self):
        self.lines = []
        self.uid = 0
    def __call__(self, s):
        for l in s.strip("\n").split("\n"):
            self.lines.append("    " + l.strip())
    def label(self, l):
        self.lines.append(l + ":")
    def newlabel(self, p="L"):
        self.uid += 1
        return f"{p}_{self.uid}"
    def comment(self, s):
        self.lines.append("    ; " + s)
    def text(self):
        return "\n".join(self.lines) + "\n"

def srd(a, s, ptr_lo, nbytes):
    a(f"s_mov_b32 s{s}, s{ptr_lo}")
    a(f"s_and_b32 s{s+1}, s{ptr_lo+1}, 0xffff")
    a(f"s_mov_b32 s{s+2}, 0x{nbytes:x}")
    a(f"s_mov_b32 s{s+3}, 0x00020000")

def kernel_header(a, name):
    a.lines.append(f".globl {name}")
    a.lines.append(".p2align 8")
    a.lines.append(f".type {name},@function")
    a.lines.append(f"{name}:")

def kernel_desc(name, vgpr, sgpr, accum, wgy=False):
    s = f""".amdhsa_kernel {name}
  .amdhsa_next_free_vgpr {vgpr}
  .amdhsa_next_free_sgpr {sgpr}
  .amdhsa_accum_offset {accum}
  .amdhsa_group_segment_fixed_size 0
  .amdhsa_kernarg_size 120
  .amdhsa_user_sgpr_count 2
  .amdhsa_user_sgpr_kernarg_segment_ptr 1
  .amdhsa_system_sgpr_workgroup_id_x 1
"""
    if wgy:
        s += "  .amdhsa_system_sgpr_workgroup_id_y 1\n"
    s += ".end_amdhsa_kernel\n"
    return s

def wave_sum(a, v, t, op="v_add_f32"):
    a("s_nop 1")
    a(f"{op}_dpp {t}, {v}, {v} quad_perm:[1,0,3,2] row_mask:0xf bank_mask:0xf")
    a("s_nop 1")
    a(f"{op}_dpp {v}, {t}, {t} quad_perm:[2,3,0,1] row_mask:0xf bank_mask:0xf")
    a("s_nop 1")
    a(f"{op}_dpp {t}, {v}, {v} row_half_mirror row_mask:0xf bank_mask:0xf")
    a("s_nop 1")
    a(f"{op}_dpp {v}, {t}, {t} row_mirror row_mask:0xf bank_mask:0xf")
    xrow_reduce(a, v, t, op)

def xrow_reduce(a, v, t, op):
    a(f"v_mov_b32 {t}, {v}")
    a("s_nop 1")
    a(f"v_permlane16_swap_b32 {v}, {t}")
    a("s_nop 1")
    a(f"{op} {v}, {v}, {t}")
    a(f"v_mov_b32 {t}, {v}")
    a("s_nop 1")
    a(f"v_permlane32_swap_b32 {v}, {t}")
    a("s_nop 1")
    a(f"{op} {v}, {v}, {t}")
```

```python
from common import *

K1_GRID = 864
K1_LDS = 64*528

def gen_k1(a):
    kernel_header(a, "k1_kernel")
    a("s_cmp_ge_u32 s2, 864")
    a("s_cbranch_scc1 K1_END")
    a("s_load_dwordx2 s[4:5], s[0:1], 0")
    a("s_load_dwordx4 s[8:11], s[0:1], 16")
    a("s_load_dwordx4 s[12:15], s[0:1], 32")
    a("s_load_dwordx4 s[16:19], s[0:1], 64")
    a("s_load_dwordx4 s[20:23], s[0:1], 80")
    a("s_load_dwordx2 s[6:7], s[0:1], 112")
    a("s_waitcnt lgkmcnt(0)")
    srd(a, 24, 6, WS_SIZE)
    a("s_cmp_ge_u32 s2, 808")
    a("s_cbranch_scc1 K1_FILL")
    a("s_cmp_ge_u32 s2, 680")
    a("s_cbranch_scc1 K1_LN")
    a("s_cmp_ge_u32 s2, 384")
    a("s_cbranch_scc1 K1_P1")
    a("s_lshr_b32 s38, s2, 7")
    a("s_and_b32 s39, s2, 127")
    a("s_lshr_b32 s33, s39, 4")
    a("s_and_b32 s34, s39, 15")
    a("s_mov_b32 s30, 8192")
    a("s_mov_b32 s32, 16")
    a("s_mov_b32 s35, 0x400000")
    a("s_lshl_b32 s31, s38, 22")
    a(f"s_add_u32 s31, s31, 0x{WQP:x}")
    a("s_mov_b64 s[36:37], s[8:9]")
    a("s_cmp_eq_u32 s38, 0")
    a("s_cbranch_scc1 K1_PGO")
    a("s_mov_b64 s[36:37], s[10:11]")
    a("s_cmp_eq_u32 s38, 1")
    a("s_cbranch_scc1 K1_PGO")
    a("s_mov_b64 s[36:37], s[12:13]")
    a("s_branch K1_PGO")
    a.label("K1_P1")
    a("s_cmp_ge_u32 s2, 512")
    a("s_cbranch_scc1 K1_P2")
    a("s_sub_u32 s39, s2, 384")
    a("s_lshr_b32 s33, s39, 1")
    a("s_and_b32 s34, s39, 1")
    a("s_mov_b32 s30, 1024")
    a("s_mov_b32 s32, 128")
    a("s_mov_b32 s35, 0x400000")
    a(f"s_mov_b32 s31, 0x{WOP:x}")
    a("s_mov_b64 s[36:37], s[14:15]")
    a("s_branch K1_PGO")
    a.label("K1_P2")
    a("s_cmp_ge_u32 s2, 624")
    a("s_cbranch_scc1 K1_P3")
    a("s_sub_u32 s39, s2, 512")
    a(f"s_mov_b32 s31, 0x{WGP:x}")
    a("s_mov_b64 s[36:37], s[18:19]")
    a("s_cmp_lt_u32 s39, 56")
    a("s_cbranch_scc1 K1_P2b")
    a("s_sub_u32 s39, s39, 56")
    a(f"s_mov_b32 s31, 0x{WUP:x}")
    a("s_mov_b64 s[36:37], s[20:21]")
    a.label("K1_P2b")
    a("s_mul_i32 s33, s39, 37")
    a("s_lshr_b32 s33, s33, 8")
    a("s_mul_i32 s34, s33, 7")
    a("s_sub_u32 s34, s39, s34")
    a("s_mov_b32 s30, 3584")
    a("s_mov_b32 s32, 16")
    a(f"s_mov_b32 s35, 0x{512*1792*2:x}")
    a("s_branch K1_PGO")
    a.label("K1_P3")
    a("s_sub_u32 s39, s2, 624")
    a("s_lshr_b32 s33, s39, 1")
    a("s_and_b32 s34, s39, 1")
    a("s_mov_b32 s30, 1024")
    a("s_mov_b32 s32, 56")
    a(f"s_mov_b32 s35, 0x{512*1792*2:x}")
    a(f"s_mov_b32 s31, 0x{WDP:x}")
    a("s_mov_b64 s[36:37], s[22:23]")
    a.label("K1_PGO")
    a("s_mov_b32 s40, s36")
    a("s_and_b32 s41, s37, 0xffff")
    a("s_mov_b32 s42, s35")
    a("s_mov_b32 s43, 0x00020000")
    a("s_lshl_b32 s44, s33, 6")
    a("s_mul_i32 s44, s44, s30")
    a("s_lshl_b32 s45, s34, 9")
    a("s_add_u32 s44, s44, s45")
    a("s_lshl_b32 s45, s30, 3")
    a("v_lshrrev_b32 v1, 5, v0")
    a("v_and_b32 v2, 31, v0")
    a("v_lshlrev_b32 v2, 4, v2")
    a("v_mul_lo_u32 v3, v1, s30")
    a("v_add_u32 v3, v3, v2")
    a("s_movk_i32 s46, 528")
    a("v_mul_lo_u32 v4, v1, s46")
    a("v_add_u32 v4, v4, v2")
    for p in range(8):
        a(f"buffer_load_dwordx4 v[{8+4*p}:{11+4*p}], v3, s[40:43], s44 offen")
        if p < 7:
            a("s_add_u32 s44, s44, s45")
    for p in range(8):
        a(f"s_waitcnt vmcnt({7-p})")
        a(f"ds_write_b128 v4, v[{8+4*p}:{11+4*p}] offset:{p*8*528}")
    a("s_waitcnt lgkmcnt(0)")
    a("s_barrier")
    a("v_and_b32 v5, 63, v0")
    a("v_lshrrev_b32 v6, 6, v0")
    a("v_lshrrev_b32 v7, 4, v5")
    a("v_bfe_u32 v1, v5, 2, 2")
    a("v_lshl_add_u32 v1, v7, 3, v1")
    a("v_mul_lo_u32 v1, v1, s46")
    a("v_and_b32 v2, 3, v5")
    a("v_lshl_add_u32 v1, v2, 4, v1")
    a("v_lshl_add_u32 v1, v6, 7, v1")
    a("s_lshl_b32 s47, s32, 12")
    a("v_mul_lo_u32 v2, v6, s47")
    a("v_lshl_add_u32 v2, v5, 4, v2")
    a("s_lshl_b32 s48, s34, 4")
    a("s_mul_i32 s48, s48, s32")
    a("s_lshl_b32 s49, s33, 1")
    a("s_add_u32 s48, s48, s49")
    a("s_lshl_b32 s48, s48, 10")
    a("s_add_u32 s48, s48, s31")
    a("s_lshl_b32 s50, s32, 10")
    idx = 0
    for pp in range(2):
        for tt in range(2):
            for cc in range(2):
                r = 8 + 4*idx
                for half in range(2):
                    off = cc*32*528 + half*4*528 + pp*64 + tt*8
                    a(f"ds_read_b64_tr_b16 v[{r+2*half}:{r+2*half+1}], v1 offset:{off}")
                idx += 1
    idx = 0
    for pp in range(2):
        for tt in range(2):
            a(f"s_mul_i32 s49, s50, {2*pp+tt}")
            a("s_add_u32 s49, s49, s48")
            a("s_add_u32 s51, s49, 1024")
            for cc in range(2):
                r = 8 + 4*idx
                a(f"s_waitcnt lgkmcnt({2*(7-idx)})")
                a(f"buffer_store_dwordx4 v[{r}:{r+3}], v2, s[24:27], s{49 if cc==0 else 51} offen")
                idx += 1
    a("s_branch K1_END")
    a.label("K1_LN")
    srd(a, 28, 4, 2048*1024)
    srd(a, 32, 16, 1024)
    a("s_sub_u32 s36, s2, 680")
    a("s_lshl_b32 s36, s36, 4")
    a("v_and_b32 v1, 63, v0")
    a("v_lshrrev_b32 v2, 6, v0")
    a("v_lshlrev_b32 v3, 4, v1")
    a("v_lshl_add_u32 v4, v2, 12, v3")
    a("s_lshl_b32 s37, s36, 10")
    a("buffer_load_dwordx4 v[8:11], v3, s[32:35], 0 offen")
    for i in range(4):
        a(f"buffer_load_dwordx4 v[{12+4*i}:{15+4*i}], v4, s[28:31], s37 offen offset:{1024*i}")
    a("s_waitcnt vmcnt(4)")
    for j in range(4):
        a(f"v_lshlrev_b32 v{40+2*j}, 16, v{8+j}")
        a(f"v_and_b32 v{41+2*j}, 0xffff0000, v{8+j}")
    a("s_mov_b32 s38, 0x3b000000")
    a("s_mov_b32 s39, 0x3727c5ac")
    for i in range(4):
        a(f"s_waitcnt vmcnt({3-i})") if i == 0 else None
        b = 12 + 4*i
        if i > 0:
            a("s_waitcnt vmcnt(0)") if i == 1 else None
        for j in range(4):
            a(f"v_lshlrev_b32 v{48+2*j}, 16, v{b+j}")
            a(f"v_and_b32 v{49+2*j}, 0xffff0000, v{b+j}")
        a("v_add_f32 v56, v48, v49")
        for j in range(2, 8):
            a(f"v_add_f32 v56, v56, v{48+j}")
        wave_sum(a, "v56", "v57")
        a("v_mul_f32 v56, s38, v56")
        a("v_sub_f32 v58, v48, v56")
        a("v_mul_f32 v59, v58, v58")
        for j in range(1, 8):
            a(f"v_sub_f32 v58, v{48+j}, v56")
            a(f"v_fmac_f32 v59, v58, v58")
        wave_sum(a, "v59", "v57")
        a("v_mul_f32 v59, s38, v59")
        a("v_cvt_pk_bf16_f32 v58, v56, v59")
        a("v_lshlrev_b32 v56, 16, v58")
        a("v_and_b32 v59, 0xffff0000, v58")
        a("v_add_f32 v59, s39, v59")
        a("v_cvt_pk_bf16_f32 v59, v59, v59")
        a("v_lshlrev_b32 v59, 16, v59")
        a("v_sqrt_f32 v59, v59")
        a("s_nop 0")
        a("v_cvt_pk_bf16_f32 v59, v59, v59")
        a("v_lshlrev_b32 v59, 16, v59")
        a("v_rcp_f32 v58, v59")
        a("s_nop 0")
        for j in range(0, 8, 2):
            a(f"v_sub_f32 v60, v{48+j}, v56")
            a(f"v_sub_f32 v61, v{49+j}, v56")
            a("v_cvt_pk_bf16_f32 v60, v60, v61")
            a("v_and_b32 v61, 0xffff0000, v60")
            a("v_lshlrev_b32 v60, 16, v60")
            a("v_mul_f32 v62, v60, v58")
            a("v_mul_f32 v63, v61, v58")
            a("v_fma_f32 v60, -v62, v59, v60")
            a("v_fma_f32 v61, -v63, v59, v61")
            a("v_fma_f32 v62, v60, v58, v62")
            a("v_fma_f32 v63, v61, v58, v63")
            a(f"v_cvt_pk_bf16_f32 v{64+j//2}, v62, v63")
        a("v_mov_b32 v60, 0")
        for j in range(4):
            a(f"v_lshlrev_b32 v61, 16, v{64+j}")
            a(f"v_and_b32 v62, 0xffff0000, v{64+j}")
            a(f"v_fmac_f32 v60, v61, v{40+2*j}")
            a(f"v_fmac_f32 v60, v62, v{41+2*j}")
        a(f"buffer_store_dwordx4 v[64:67], v4, s[24:27], s37 offen offset:{1024*i}")
        wave_sum(a, "v60", "v57")
        a("v_cvt_pk_bf16_f32 v60, v60, v60")
        a("v_lshlrev_b32 v60, 16, v60")
        a("v_lshlrev_b32 v61, 4, v2")
        a("s_lshl_b32 s40, s36, 2")
        a(f"s_add_u32 s40, s40, 0x{R_OFF + 4*i:x}")
        a("v_cmp_eq_u32 vcc, 0, v1")
        a("s_and_saveexec_b64 s[42:43], vcc")
        a("buffer_store_dword v60, v61, s[24:27], s40 offen")
        a("s_mov_b64 exec, s[42:43]")
        a("s_nop 1")
    a("s_branch K1_END")
    a.label("K1_FILL")
    a("s_sub_u32 s36, s2, 808")
    a("s_lshl_b32 s36, s36, 15")
    a(f"s_add_u32 s36, s36, 0x{FILL_BEG:x}")
    a("v_lshlrev_b32 v1, 4, v0")
    for j in range(4):
        a(f"v_mov_b32 v{4+j}, -1")
    for p in range(8):
        a(f"s_add_u32 s37, s36, {4096*p}")
        a("buffer_store_dwordx4 v[4:7], v1, s[24:27], s37 offen")
    a.label("K1_END")
    a("s_endpgm")
    return kernel_desc("k1_kernel", 72, 64, 72)
```

```python
from common import *
from proj import *
K2_GRID = 256 + 14
def gen_ffn1(a):
    a.label("K2_FFN1")
    a("s_sub_u32 s30, s2, 256")
    a("s_lshl_b32 s30, s30, 2")
    a("s_add_u32 s30, s30, s29")
    a("v_lshlrev_b32 v4, 7, v1")
    a(f"s_mov_b32 s31, 0x{R_OFF:x}")
    for i in range(8):
        a(f"buffer_load_dwordx4 {v4(64+4*i)}, v4, s[24:27], s31 offen offset:{16*i}")
    a("s_waitcnt vmcnt(0)")
    a("v_lshlrev_b32 v5, 5, v1")
    a("v_sub_u32 v5, 2047, v5")
    for i in range(32):
        r = 64 + i
        a(f"v_ashrrev_i32 v6, 31, v{r}")
        a(f"v_or_b32 v6, 0x80000000, v6")
        a(f"v_xor_b32 v{r}, v{r}, v6")
        a(f"v_and_b32 v{r}, 0xffff0000, v{r}")
        a(f"v_subrev_u32 v6, {i}, v5")
        a(f"v_or_b32 v{r}, v{r}, v6")
    a("v_mov_b32 v10, -1")
    for j in range(8):
        a("v_mov_b32 v8, 0")
        for i in range(32):
            a(f"v_cmp_lt_u32 vcc, v{64+i}, v10")
            a("s_nop 1")
            a(f"v_cndmask_b32 v6, 0, v{64+i}, vcc")
            a("v_max_u32 v8, v8, v6")
        wave_sum(a, "v8", "v9", "v_max_u32")
        a("v_mov_b32 v10, v8")
        a("s_nop 0")
        a(f"v_readfirstlane_b32 s{40+j}, v8")
    for j in range(8):
        a(f"s_and_b32 s{40+j}, s{40+j}, 0x7ff")
        a(f"s_sub_u32 s{40+j}, 2047, s{40+j}")
    a("v_and_b32 v16, 15, v1")
    a("v_lshrrev_b32 v17, 4, v1")
    a("v_and_b32 v18, 7, v16")
    a("v_mov_b32 v11, s40")
    for j in range(1, 8):
        a(f"v_cmp_eq_u32 vcc, {j}, v18")
        a(f"v_mov_b32 v12, s{40+j}")
        a("s_nop 0")
        a("v_cndmask_b32 v11, v11, v12, vcc")
    a("s_cmp_lg_u32 s30, 0")
    a("s_cbranch_scc1 K2_F1A")
    a("v_lshlrev_b32 v12, 2, v11")
    a("buffer_load_dword v13, v12, s[24:27], s31 offen")
    a("v_lshlrev_b32 v12, 2, v18")
    a(f"s_mov_b32 s32, 0x{IDX_OFF:x}")
    a("buffer_store_dword v11, v12, s[24:27], s32 offen")
    a("s_waitcnt vmcnt(0)")
    a("buffer_store_dword v13, v12, s[24:27], s32 offen offset:32")
    a.label("K2_F1A")
    a("v_lshlrev_b32 v12, 10, v11")
    a("v_lshl_add_u32 v12, v17, 4, v12")
    for c in range(16):
        a(f"buffer_load_dwordx4 {v4(64+4*c)}, v12, s[24:27], 0 offen offset:{c*64}")
    a("s_lshl_b32 s32, s30, 15")
    a(f"s_add_u32 s33, s32, 0x{WGP:x}")
    a(f"s_add_u32 s34, s32, 0x{WUP:x}")
    for m, sb in enumerate((33, 34)):
        for i in range(32):
            r = m*128 + i*4
            a(f"buffer_load_dwordx4 a[{r}:{r+3}], v3, s[24:27], s{sb} offen offset:{(i%4)*1024}")
            if i % 4 == 3:
                a(f"s_add_u32 s{sb}, s{sb}, 4096")
    a("s_waitcnt vmcnt(0)")
    for c in range(16):
        for m in range(2):
            for T in range(2):
                acc = 40 + (m*2+T)*4
                r = m*128 + (T*16+c)*4
                z = "0" if c == 0 else v4(acc)
                a(f"v_mfma_f32_16x16x32_bf16 {v4(acc)}, a[{r}:{r+3}], {v4(64+4*c)}, {z}")
    a("s_nop 7")
    a("s_mov_b32 s35, 0xbfb8aa3b")
    for i in range(0, 8, 2):
        a(f"v_cvt_pk_bf16_f32 v4, v{40+i}, v{41+i}")
        a("v_lshlrev_b32 v5, 16, v4")
        a("v_and_b32 v6, 0xffff0000, v4")
        for g in ("v5", "v6"):
            a(f"v_mul_f32 v7, s35, {g}")
            a("v_exp_f32 v7, v7")
            a("s_nop 0")
            a("v_add_f32 v7, 1.0, v7")
            a("v_rcp_f32 v7, v7")
            a("s_nop 0")
            a(f"v_mul_f32 {g}, {g}, v7")
        a("v_cvt_pk_bf16_f32 v4, v5, v6")
        a("v_lshlrev_b32 v5, 16, v4")
        a("v_and_b32 v6, 0xffff0000, v4")
        a(f"v_cvt_pk_bf16_f32 v4, v{48+i}, v{49+i}")
        a("v_lshlrev_b32 v7, 16, v4")
        a("v_and_b32 v8, 0xffff0000, v4")
        a("v_mul_f32 v5, v5, v7")
        a("v_mul_f32 v6, v6, v8")
        a(f"v_cvt_pk_bf16_f32 v{56+i//2}, v5, v6")
    a("s_movk_i32 s35, 3584")
    a("v_mul_lo_u32 v4, v16, s35")
    a("v_lshl_add_u32 v4, v17, 4, v4")
    a("v_mov_b32 v5, 0x7ffffff0")
    a("v_cmp_gt_u32 vcc, 8, v16")
    a("s_nop 1")
    a("v_cndmask_b32 v4, v5, v4, vcc")
    a("s_lshl_b32 s36, s30, 6")
    a(f"s_add_u32 s36, s36, 0x{H_OFF:x}")
    a("buffer_store_dwordx4 v[56:59], v4, s[24:27], s36 offen")

def gen_k2(a):
    kernel_header(a, "k2_kernel")
    a("s_cmp_ge_u32 s2, 270")
    a("s_cbranch_scc1 K2_END")
    a("s_load_dwordx2 s[6:7], s[0:1], 112")
    a("v_lshrrev_b32 v2, 6, v0")
    a("v_and_b32 v1, 63, v0")
    a("s_nop 0")
    a("v_readfirstlane_b32 s29, v2")
    a("s_and_b32 s28, s2, 31")
    a("s_lshr_b32 s30, s2, 5")
    a("s_waitcnt lgkmcnt(0)")
    srd(a, 24, 6, WS_SIZE)
    a("v_lshlrev_b32 v3, 4, v1")
    a("s_cmp_ge_u32 s2, 256")
    a("s_cbranch_scc1 K2_FFN1")
    load_qkv_weights(a, 24, "v3", 28, 29, 32, 33)
    a("v_and_b32 v4, 15, v1")
    a("v_lshrrev_b32 v5, 4, v1")
    a("v_lshrrev_b32 v6, 2, v4")
    a("v_and_b32 v7, 3, v4")
    a("v_lshl_add_u32 v6, v6, 3, v7")
    a("v_lshlrev_b32 v8, 10, v6")
    a("v_lshl_add_u32 v8, v5, 4, v8")
    a("v_lshlrev_b32 v9, 13, v6")
    a("v_lshl_add_u32 v9, v5, 4, v9")
    a("v_lshl_add_u32 v9, v2, 6, v9")
    a("v_lshl_add_u32 v10, v2, 5, v6")
    a("v_lshlrev_b32 v10, 12, v10")
    a("v_lshl_add_u32 v10, v5, 4, v10")
    a("s_lshl_b32 s31, s30, 8")
    a("s_lshl_b32 s34, s31, 10")
    a("s_lshl_b32 s35, s31, 13")
    a("s_lshl_b32 s37, s28, 8")
    a("s_add_u32 s35, s35, s37")
    a(f"s_add_u32 s35, s35, 0x{Q_OFF:x}")
    a("s_lshl_b32 s36, s28, 19")
    a("s_lshl_b32 s37, s31, 1")
    a("s_add_u32 s36, s36, s37")
    a(f"s_add_u32 s36, s36, 0x{VT_OFF:x}")
    for c in range(16):
        a(f"buffer_load_dwordx4 {tokf(c)}, v8, s[24:27], s34 offen offset:{c*64}")
    a("s_mov_b32 s38, 0")
    a("s_waitcnt vmcnt(0)")
    a.label("K2_LOOP")
    for Tt in range(2):
        S_prev = 4 if Tt == 0 else 2
        a(f"s_add_u32 s39, s34, {4096 if Tt == 0 else 28*1024}")
        for c in range(16):
            a(f"s_waitcnt vmcnt({15+S_prev})")
            proj_step(a, c)
            a(f"buffer_load_dwordx4 {tokf(c)}, v8, s[24:27], s39 offen offset:{c*64}")
        a("s_mov_b32 s34, s39")
        a("s_nop 7")
        a(f"v_cvt_pk_bf16_f32 v12, v{ACCQ[0]}, v{ACCQ[0]+1}")
        a(f"v_cvt_pk_bf16_f32 v13, v{ACCQ[0]+2}, v{ACCQ[0]+3}")
        a(f"v_cvt_pk_bf16_f32 v14, v{ACCQ[1]}, v{ACCQ[1]+1}")
        a(f"v_cvt_pk_bf16_f32 v15, v{ACCQ[1]+2}, v{ACCQ[1]+3}")
        a("buffer_store_dwordx4 v[12:15], v9, s[24:27], s35 offen")
        a(f"v_cvt_pk_bf16_f32 v16, v{ACCK[0]}, v{ACCK[0]+1}")
        a(f"v_cvt_pk_bf16_f32 v17, v{ACCK[0]+2}, v{ACCK[0]+3}")
        a(f"v_cvt_pk_bf16_f32 v18, v{ACCK[1]}, v{ACCK[1]+1}")
        a(f"v_cvt_pk_bf16_f32 v19, v{ACCK[1]+2}, v{ACCK[1]+3}")
        a(f"s_add_u32 s40, s35, 0x{K_OFF-Q_OFF:x}")
        a("buffer_store_dwordx4 v[16:19], v9, s[24:27], s40 offen")
        for T in range(2):
            a(f"v_cvt_pk_bf16_f32 v{20+4*T+2*Tt}, v{ACCV[T]}, v{ACCV[T]+1}")
            a(f"v_cvt_pk_bf16_f32 v{21+4*T+2*Tt}, v{ACCV[T]+2}, v{ACCV[T]+3}")
        if Tt == 1:
            a("buffer_store_dwordx4 v[20:23], v10, s[24:27], s36 offen")
            a("s_add_u32 s40, s36, 16384")
            a("buffer_store_dwordx4 v[24:27], v10, s[24:27], s40 offen")
            a("s_add_u32 s36, s36, 64")
            a(f"s_add_u32 s35, s35, {28*8192}")
        else:
            a(f"s_add_u32 s35, s35, {4*8192}")
    a("s_add_u32 s38, s38, 1")
    a("s_cmp_lt_u32 s38, 8")
    a("s_cbranch_scc1 K2_LOOP")
    a("s_branch K2_END")
    gen_ffn1(a)
    a.label("K2_END")
    a("s_endpgm")
    return kernel_desc("k2_kernel", 512, 64, 256)
```

```python
from common import *
from proj import *
K3_GRID = 32
LDS_WO = 0
LDS_SC = 131072
LDS_O = 143360
LDS_MEM = 147456
K3_LDS = 155648
SPIN_MAX = 0x40000
STAMP = False
SAMEXCD = False
DBG_OFF = 0x8000000
def stamp(a, i):
    if not STAMP: return
    a("s_memtime s[60:61]")
    a("s_waitcnt lgkmcnt(0)")
    a("v_mov_b32 v21, s60")
    a("s_lshl_b32 s62, s30, 6")
    a("s_lshl_b32 s63, s2, 14")
    a("s_add_u32 s62, s62, s63")
    a("s_lshl_b32 s63, s29, 12")
    a("s_add_u32 s62, s62, s63")
    a(f"s_add_u32 s62, s62, 0x{DBG_OFF + 4*i:x}")
    a("v_mov_b32 v22, 0")
    a("buffer_store_dword v21, v22, s[24:27], s62 offen")

def gen_k3(a):
    ST = "" if SAMEXCD else " sc1"
    kernel_header(a, "k3_kernel")
    if SAMEXCD:
        a("s_cmp_ge_u32 s2, 256")
        a("s_cbranch_scc1 K3_END")
        a("s_and_b32 s3, s2, 7")
        a("s_cmp_lg_u32 s3, 0")
        a("s_cbranch_scc1 K3_END")
        a("s_lshr_b32 s2, s2, 3")
    else:
        a("s_cmp_ge_u32 s2, 32")
        a("s_cbranch_scc1 K3_END")
    a("s_load_dwordx2 s[6:7], s[0:1], 112")
    a("s_load_dwordx2 s[4:5], s[0:1], 8")
    a("v_lshrrev_b32 v2, 6, v0")
    a("v_and_b32 v1, 63, v0")
    a("s_nop 0")
    a("v_readfirstlane_b32 s29, v2")
    a("s_mov_b32 s28, s2")
    a("s_waitcnt lgkmcnt(0)")
    srd(a, 24, 6, WS_SIZE)
    srd(a, 20, 4, 8192)
    a("v_lshlrev_b32 v3, 4, v1")
    a("s_lshl_b32 s32, s29, 20")
    a("s_lshl_b32 s33, s28, 12")
    a("s_add_u32 s32, s32, s33")
    a(f"s_add_u32 s32, s32, 0x{WOP:x}")
    for i in range(8):
        for c in range(4):
            r = 64 + (i%4)*16 + c*4
            a(f"buffer_load_dwordx4 v[{r}:{r+3}], v3, s[24:27], s32 offen offset:{c*1024}")
        a("s_add_u32 s32, s32, 0x20000")
        if i % 4 == 3:
            a("v_lshl_add_u32 v4, v2, 15, v3")
            a("s_waitcnt vmcnt(0)")
            for ii in range(4):
                for c in range(4):
                    r = 64 + ii*16 + c*4
                    a(f"ds_write_b128 v4, v[{r}:{r+3}] offset:{((i-3+ii)*4+c)*1024}")
            a("s_waitcnt lgkmcnt(0)")
    load_qkv_weights(a, 24, "v3", 28, 29, 32, 33)
    a("v_and_b32 v16, 15, v1")
    a("v_lshrrev_b32 v17, 4, v1")
    a("v_lshrrev_b32 v18, 2, v16")
    a("v_and_b32 v19, 3, v16")
    a("v_lshl_add_u32 v18, v18, 3, v19")
    a("v_mov_b32 v20, 0x7ffffff0")
    a("v_cmp_gt_u32 s[40:41], 8, v16")
    a("v_cmp_gt_u32 s[42:43], 2, v17")
    a("v_lshlrev_b32 v4, 10, v16")
    a("v_lshl_add_u32 v4, v17, 4, v4")
    a("v_cndmask_b32 v4, v20, v4, s[40:41]")
    a("v_lshlrev_b32 v5, 13, v18")
    a("v_lshl_add_u32 v5, v2, 6, v5")
    a("v_lshl_add_u32 v5, v17, 4, v5")
    a("v_lshl_add_u32 v6, v2, 5, v18")
    a("v_lshlrev_b32 v6, 12, v6")
    a("v_lshl_add_u32 v6, v17, 4, v6")
    a("v_lshlrev_b32 v7, 13, v16")
    a("v_lshl_add_u32 v7, v2, 6, v7")
    a("v_lshl_add_u32 v7, v17, 4, v7")
    a("v_cndmask_b32 v7, v20, v7, s[40:41]")
    a("v_lshl_add_u32 v8, v2, 5, v18")
    a("v_lshlrev_b32 v8, 4, v8")
    a("v_lshl_add_u32 v8, v17, 3, v8")
    a("v_cndmask_b32 v8, v20, v8, s[42:43]")
    a("s_movk_i32 s32, 3072")
    a("v_mul_lo_u32 v9, v2, s32")
    a("v_add_u32 v9, v9, v3")
    a(f"v_add_u32 v9, 0x{LDS_SC:x}, v9")
    a(f"v_add_u32 v10, 0x{LDS_SC:x}, v3")
    a("v_lshlrev_b32 v12, 8, v16")
    a("v_lshl_add_u32 v12, v17, 4, v12")
    a(f"v_add_u32 v12, 0x{LDS_O:x}, v12")
    a("v_lshl_add_u32 v11, v2, 6, v12")
    a("v_lshlrev_b32 v13, 17, v2")
    a("v_lshrrev_b32 v19, 1, v16")
    a("v_lshl_add_u32 v13, v19, 12, v13")
    a("v_and_b32 v19, 1, v16")
    a("v_lshl_add_u32 v13, v19, 6, v13")
    a("v_lshl_add_u32 v13, v17, 4, v13")
    a("v_cndmask_b32 v13, v20, v13, s[40:41]")
    a("v_lshl_add_u32 v14, v2, 15, v3")
    a("v_lshl_add_u32 v15, v2, 7, v3")
    a("v_cmp_gt_u32 s[44:45], 8, v1")
    a("s_nop 1")
    a("v_cndmask_b32 v15, v20, v15, s[44:45]")
    a("v_lshl_add_u32 v23, v2, 12, v3")
    a("v_lshl_add_u32 v0, v2, 11, v3")
    a("v_and_b32 v19, 7, v16")
    a("v_lshl_add_u32 v19, v19, 2, v17")
    a("v_lshlrev_b32 v19, 4, v19")
    a(f"v_add_u32 v1, 0x{LDS_MEM:x}, v19")
    a(f"v_add_u32 v2, 0x{LDS_MEM:x}, v0")
    a("s_mov_b32 s30, 0")
    a("s_lshl_b32 s46, s28, 8")
    a(f"s_add_u32 s47, s46, 0x{K_OFF:x}")
    a("s_lshl_b32 s48, s28, 19")
    a(f"s_add_u32 s48, s48, 0x{VT_OFF:x}")
    a(f"s_add_u32 s49, s46, 0x{KM_OFF:x}")
    a("s_lshl_b32 s50, s28, 11")
    a(f"s_add_u32 s50, s50, 0x{VMT_OFF:x}")
    a(f"s_mov_b32 s51, 0x{MEMBUF_OFF:x}")
    a("s_lshr_b32 s52, s28, 1")
    a("s_lshl_b32 s52, s52, 9")
    a("s_and_b32 s53, s28, 1")
    a("s_lshl_b32 s53, s53, 3")
    a("s_add_u32 s52, s52, s53")
    a("s_mov_b32 s54, 0x3db504f3")
    a("s_mov_b32 s55, 0x3fb8aa3b")
    a("s_mov_b32 s56, 0xff800000")
    a("buffer_load_dwordx4 v[24:27], v5, s[24:27], s47 offen")
    a("s_add_u32 s32, s47, 32768")
    a("buffer_load_dwordx4 v[28:31], v5, s[24:27], s32 offen")
    a("buffer_load_dwordx4 v[32:35], v6, s[24:27], s48 offen")
    a("s_add_u32 s32, s48, 16384")
    a("buffer_load_dwordx4 v[36:39], v6, s[24:27], s32 offen")
    a("s_waitcnt vmcnt(0) lgkmcnt(0)")
    a("s_barrier")
    a.label("K3_STEP")
    stamp(a, 0)
    a("s_cmp_lg_u32 s30, 0")
    a("s_cbranch_scc1 K3_POLLM")
    for c in range(16):
        a(f"buffer_load_dwordx4 {tokf(c)}, v4, s[20:23], 0 offen offset:{c*64}")
    a("s_waitcnt vmcnt(0)")
    a("s_branch K3_PROJ")
    a.label("K3_POLLM")
    a("s_mov_b32 s31, 0")
    a.label("K3_POLLM_L")
    a("buffer_load_dwordx4 v[64:67], v0, s[24:27], s51 offen sc1")
    a("buffer_load_dwordx4 v[68:71], v0, s[24:27], s51 offen offset:1024 sc1")
    a("s_waitcnt vmcnt(0)")
    a("v_max3_u32 v16, v64, v65, v66")
    a("v_max3_u32 v16, v16, v67, v68")
    a("v_max3_u32 v16, v16, v69, v70")
    a("v_max_u32 v16, v16, v71")
    a("v_cmp_eq_u32 vcc, -1, v16")
    a("s_add_u32 s31, s31, 1")
    a(f"s_cmp_gt_u32 s31, 0x{SPIN_MAX:x}")
    a("s_cbranch_scc1 K3_END")
    a("s_cbranch_vccnz K3_POLLM_L")
    a("ds_write_b128 v2, v[64:67]")
    a("ds_write_b128 v2, v[68:71] offset:1024")
    a("s_waitcnt lgkmcnt(0)")
    a("s_barrier")
    for c in range(16):
        a(f"ds_read_b128 {tokf(c)}, v1 offset:{c*512}")
    a.label("K3_PROJ")
    stamp(a, 1)
    for c in range(16):
        if c < 16:
            a(f"s_waitcnt lgkmcnt({min(15-c, 15)})")
        proj_step(a, c)
    a("s_nop 7")
    stamp(a, 2)
    a(f"v_cvt_pk_bf16_f32 v64, v{ACCQ[0]}, v{ACCQ[0]+1}")
    a(f"v_cvt_pk_bf16_f32 v65, v{ACCQ[0]+2}, v{ACCQ[0]+3}")
    a(f"v_cvt_pk_bf16_f32 v66, v{ACCQ[1]}, v{ACCQ[1]+1}")
    a(f"v_cvt_pk_bf16_f32 v67, v{ACCQ[1]+2}, v{ACCQ[1]+3}")
    a(f"v_cvt_pk_bf16_f32 v68, v{ACCK[0]}, v{ACCK[0]+1}")
    a(f"v_cvt_pk_bf16_f32 v69, v{ACCK[0]+2}, v{ACCK[0]+3}")
    a(f"v_cvt_pk_bf16_f32 v70, v{ACCK[1]}, v{ACCK[1]+1}")
    a(f"v_cvt_pk_bf16_f32 v71, v{ACCK[1]+2}, v{ACCK[1]+3}")
    a(f"v_cvt_pk_bf16_f32 v72, v{ACCV[0]}, v{ACCV[0]+1}")
    a(f"v_cvt_pk_bf16_f32 v73, v{ACCV[0]+2}, v{ACCV[0]+3}")
    a(f"v_cvt_pk_bf16_f32 v74, v{ACCV[1]}, v{ACCV[1]+1}")
    a(f"v_cvt_pk_bf16_f32 v75, v{ACCV[1]+2}, v{ACCV[1]+3}")
    a("v_mfma_f32_16x16x32_bf16 v[76:79], v[68:71], v[64:67], 0")
    a("v_mfma_f32_16x16x32_bf16 v[80:83], v[24:27], v[64:67], 0")
    a("v_mfma_f32_16x16x32_bf16 v[84:87], v[28:31], v[64:67], 0")
    a("buffer_store_dwordx4 v[68:71], v7, s[24:27], s49 offen")
    a("buffer_store_dwordx2 v[72:73], v8, s[24:27], s50 offen")
    a("buffer_store_dwordx2 v[74:75], v8, s[24:27], s50 offen offset:64")
    a("s_add_u32 s47, s47, 0x40000")
    a("buffer_load_dwordx4 v[24:27], v5, s[24:27], s47 offen")
    a("s_add_u32 s32, s47, 32768")
    a("buffer_load_dwordx4 v[28:31], v5, s[24:27], s32 offen")
    a("s_cmp_eq_u32 s30, 63")
    a("s_cbranch_scc1 K3_END")
    a("s_nop 4")
    a("ds_write_b128 v9, v[76:79]")
    a("ds_write_b128 v9, v[80:83] offset:1024")
    a("ds_write_b128 v9, v[84:87] offset:2048")
    a("s_waitcnt lgkmcnt(0)")
    a("s_barrier")
    dst = [88, 100, 112, 76]
    for w in range(4):
        for t in range(3):
            a(f"ds_read_b128 v[{dst[w]+4*t}:{dst[w]+4*t+3}], v10 offset:{w*3072+t*1024}")
    a("s_waitcnt lgkmcnt(0)")
    for i in range(12):
        a(f"v_add_f32 v{88+i}, v{88+i}, v{100+i}")
        a(f"v_add_f32 v{112+i}, v{112+i}, v{76+i}")
    for i in range(12):
        a(f"v_add_f32 v{88+i}, v{88+i}, v{112+i}")
    stamp(a, 3)
    for i in range(0, 12, 2):
        a(f"v_cvt_pk_bf16_f32 v100, v{88+i}, v{89+i}")
        a(f"v_lshlrev_b32 v{88+i}, 16, v100")
        a(f"v_and_b32 v{89+i}, 0xffff0000, v100")
        a(f"v_mul_f32 v{88+i}, s54, v{88+i}")
        a(f"v_mul_f32 v{89+i}, s54, v{89+i}")
        a(f"v_cvt_pk_bf16_f32 v100, v{88+i}, v{89+i}")
        a(f"v_lshlrev_b32 v{88+i}, 16, v100")
        a(f"v_and_b32 v{89+i}, 0xffff0000, v100")
    a("v_mov_b32 v100, s56")
    for i in range(4):
        a(f"v_cndmask_b32 v{88+i}, v100, v{88+i}, s[42:43]")
    a("v_max3_f32 v100, v88, v89, v90")
    for i in range(91, 99, 2):
        a(f"v_max3_f32 v100, v100, v{i}, v{i+1}")
    a("v_max_f32 v100, v100, v99")
    xrow_reduce(a, "v100", "v101", "v_max_f32")
    a("v_mul_f32 v100, s55, v100")
    for i in range(12):
        a(f"v_fma_f32 v{88+i}, v{88+i}, s55, -v100")
    for i in range(12):
        a(f"v_exp_f32 v{88+i}, v{88+i}")
    a("s_nop 0")
    a("v_add_f32 v100, v88, v89")
    for i in range(2, 12):
        a(f"v_add_f32 v100, v100, v{88+i}")
    xrow_reduce(a, "v100", "v101", "v_add_f32")
    a("v_rcp_f32 v100, v100")
    a("s_nop 0")
    for i in range(12):
        a(f"v_mul_f32 v{88+i}, v{88+i}, v100")
    for i in range(6):
        a(f"v_cvt_pk_bf16_f32 v{102+i}, v{88+2*i}, v{89+2*i}")
    a("s_nop 1")
    stamp(a, 4)
    a("v_mfma_f32_16x16x32_bf16 v[108:111], v[32:35], v[104:107], 0")
    a("v_mfma_f32_16x16x32_bf16 v[112:115], v[36:39], v[104:107], 0")
    a("v_mfma_f32_16x16x16_bf16 v[108:111], v[72:73], v[102:103], v[108:111]")
    a("v_mfma_f32_16x16x16_bf16 v[112:115], v[74:75], v[102:103], v[112:115]")
    a("s_add_u32 s48, s48, 64")
    a("buffer_load_dwordx4 v[32:35], v6, s[24:27], s48 offen")
    a("s_add_u32 s32, s48, 16384")
    a("buffer_load_dwordx4 v[36:39], v6, s[24:27], s32 offen")
    ring = [88, 92, 96, 120, 124, 100, 104, 108, 112, 116]
    for i in range(5):
        a(f"ds_read_b128 {v4(ring[i])}, v14 offset:{i*1024}")
    a("s_nop 1")
    a("v_cvt_pk_bf16_f32 v116, v108, v109")
    a("v_cvt_pk_bf16_f32 v117, v110, v111")
    a("v_cvt_pk_bf16_f32 v118, v112, v113")
    a("v_cvt_pk_bf16_f32 v119, v114, v115")
    a("ds_write_b128 v11, v[116:119]")
    a("s_waitcnt lgkmcnt(0)")
    a("s_barrier")
    for c in range(4):
        a(f"ds_read_b128 v[{72+4*c}:{75+4*c}], v12 offset:{c*64}")
    for i in range(5, 10):
        a(f"ds_read_b128 {v4(ring[i])}, v14 offset:{i*1024}")
    a("s_waitcnt lgkmcnt(5)")
    NR = 10
    for f in range(32):
        tile, c = divmod(f, 4)
        acc = 40 + 4*tile
        if f >= 5:
            issued = min(32, NR + f)
            a(f"s_waitcnt lgkmcnt({min(15, issued - f - 1)})")
        z = "0" if c == 0 else v4(acc)
        a(f"v_mfma_f32_16x16x32_bf16 {v4(acc)}, {v4(ring[f % NR])}, v[{72+4*c}:{75+4*c}], {z}")
        nf = f + NR
        if nf < 32:
            a(f"ds_read_b128 {v4(ring[nf % NR])}, v14 offset:{nf*1024}")
    a("s_nop 7")
    stamp(a, 5)
    a("s_and_b32 s32, s30, 1")
    a("s_lshl_b32 s32, s32, 19")
    a("s_lshl_b32 s33, s28, 7")
    a("s_add_u32 s57, s32, s33")
    a(f"s_add_u32 s57, s57, 0x{PART_OFF:x}")
    a("v_mov_b32 v16, -2")
    for tile in range(8):
        acc = 40 + 4*tile
        for r in range(4):
            a(f"v_min_u32 v{acc+r}, v{acc+r}, v16")
        a(f"buffer_store_dwordx4 {v4(acc)}, v13, s[24:27], s57 offen{ST}")
        if tile < 7:
            a("s_add_u32 s57, s57, 16384")
    stamp(a, 6)
    a("s_add_u32 s51, s51, 8192")
    a("s_lshl_b32 s33, s28, 14")
    a("s_add_u32 s57, s32, s33")
    a(f"s_add_u32 s57, s57, 0x{PART_OFF:x}")
    a("s_mov_b32 s31, 0")
    a.label("K3_POLLP")
    for i in range(4):
        a(f"buffer_load_dwordx4 v[{64+4*i}:{67+4*i}], v23, s[24:27], s57 offen offset:{i*1024} sc1")
    a("s_waitcnt vmcnt(0)")
    a("v_max3_u32 v16, v64, v65, v66")
    for i in range(67, 79, 2):
        a(f"v_max3_u32 v16, v16, v{i}, v{i+1}")
    a("v_max_u32 v16, v16, v79")
    a("v_cmp_eq_u32 vcc, -1, v16")
    a("s_add_u32 s31, s31, 1")
    a(f"s_cmp_gt_u32 s31, 0x{SPIN_MAX:x}")
    a("s_cbranch_scc1 K3_END")
    a("s_cbranch_vccnz K3_POLLP")
    stamp(a, 7)
    for r in range(4):
        a(f"v_add_f32 v{64+r}, v{64+r}, v{68+r}")
        a(f"v_add_f32 v{72+r}, v{72+r}, v{76+r}")
    for r in range(4):
        a(f"v_add_f32 v{64+r}, v{64+r}, v{72+r}")
    a("s_nop 1")
    for r in range(4):
        a(f"v_add_f32_dpp v{68+r}, v{64+r}, v{64+r} row_ror:8 row_mask:0xf bank_mask:0xf")
    for r in range(4):
        a(f"v_mov_b32 v{64+r}, v{68+r}")
    a("s_nop 1")
    for r in range(4):
        a(f"v_permlane16_swap_b32 v{64+r}, v{68+r}")
    a("s_nop 1")
    for r in range(4):
        a(f"v_add_f32 v{64+r}, v{64+r}, v{68+r}")
    for r in range(4):
        a(f"v_mov_b32 v{68+r}, v{64+r}")
    a("s_nop 1")
    for r in range(4):
        a(f"v_permlane32_swap_b32 v{64+r}, v{68+r}")
    a("s_nop 1")
    for r in range(4):
        a(f"v_add_f32 v{64+r}, v{64+r}, v{68+r}")
    a("v_cvt_pk_bf16_f32 v64, v64, v65")
    a("v_cvt_pk_bf16_f32 v65, v66, v67")
    a("v_mov_b32 v16, -2")
    a("v_min_u32 v64, v64, v16")
    a("v_min_u32 v65, v65, v16")
    a("s_add_u32 s58, s51, s52")
    a(f"buffer_store_dwordx2 v[64:65], v15, s[24:27], s58 offen{ST}")
    stamp(a, 8)
    for r in range(4):
        a(f"v_mov_b32 v{68+r}, -1")
    for i in range(4):
        a(f"buffer_store_dwordx4 v[68:71], v23, s[24:27], s57 offen offset:{i*1024}{ST}")
    a("s_add_u32 s30, s30, 1")
    a("s_add_u32 s49, s49, 0x10000")
    a("s_add_u32 s50, s50, 0x10000")
    a("s_branch K3_STEP")
    a.label("K3_END")
    a("s_endpgm")
    return kernel_desc("k3_kernel", 512, 72, 256)
```

```python
from common import *
from proj import v4
K4_GRID = 512 + 4
def softmax12(a, base, t0, t1, s_scale, s_log2e):
    pass

def gen_k4(a):
    kernel_header(a, "k4_kernel")
    a("s_cmp_ge_u32 s2, 516")
    a("s_cbranch_scc1 K4_END")
    a("s_load_dwordx2 s[6:7], s[0:1], 112")
    a("v_lshrrev_b32 v2, 6, v0")
    a("v_and_b32 v1, 63, v0")
    a("s_nop 0")
    a("v_readfirstlane_b32 s29, v2")
    a("s_waitcnt lgkmcnt(0)")
    srd(a, 24, 6, WS_SIZE)
    a("v_and_b32 v16, 15, v1")
    a("v_lshrrev_b32 v17, 4, v1")
    a("v_lshrrev_b32 v18, 2, v16")
    a("v_and_b32 v19, 3, v16")
    a("v_lshl_add_u32 v18, v18, 3, v19")
    a("v_mov_b32 v20, 0x7ffffff0")
    a("v_cmp_gt_u32 s[40:41], 8, v16")
    a("v_cmp_gt_u32 s[42:43], 2, v17")
    a("s_cmp_ge_u32 s2, 512")
    a("s_cbranch_scc1 K4_FFN2")
    a("s_lshr_b32 s30, s2, 3")
    a("s_and_b32 s28, s2, 7")
    a("s_lshl_b32 s28, s28, 2")
    a("s_add_u32 s28, s28, s29")
    a("s_lshl_b32 s46, s28, 8")
    a("v_lshlrev_b32 v3, 13, v16")
    a("v_lshl_add_u32 v3, v17, 4, v3")
    a("v_cndmask_b32 v4, v20, v3, s[40:41]")
    a("v_lshlrev_b32 v5, 13, v18")
    a("v_lshl_add_u32 v5, v17, 4, v5")
    a("v_lshlrev_b32 v6, 12, v18")
    a("v_lshl_add_u32 v6, v17, 4, v6")
    a("v_lshlrev_b32 v7, 4, v18")
    a("v_lshl_add_u32 v7, v17, 3, v7")
    a("v_cndmask_b32 v7, v20, v7, s[42:43]")
    a("s_lshl_b32 s31, s30, 18")
    a("s_add_u32 s31, s31, s46")
    a(f"s_add_u32 s32, s31, 0x{Q_OFF:x}")
    a(f"s_add_u32 s33, s31, 0x{K_OFF:x}")
    a(f"s_add_u32 s34, s31, 0x{O_OFF:x}")
    a("s_lshl_b32 s35, s30, 16")
    a("s_add_u32 s36, s35, s46")
    a(f"s_add_u32 s36, s36, 0x{KM_OFF:x}")
    a("s_lshl_b32 s37, s28, 11")
    a("s_add_u32 s37, s37, s35")
    a(f"s_add_u32 s37, s37, 0x{VMT_OFF:x}")
    a("s_lshl_b32 s38, s28, 19")
    a("s_lshl_b32 s39, s30, 6")
    a("s_add_u32 s38, s38, s39")
    a(f"s_add_u32 s38, s38, 0x{VT_OFF:x}")
    for Tq in range(2):
        a(f"s_add_u32 s44, s32, {Tq*16*8192}")
        for c in range(4):
            r = 64 + (Tq*4+c)*4
            a(f"buffer_load_dwordx4 {v4(r)}, v3, s[24:27], s44 offen offset:{c*64}")
    for c in range(4):
        a(f"buffer_load_dwordx4 {v4(96+4*c)}, v4, s[24:27], s36 offen offset:{c*64}")
    for Tx in range(2):
        a(f"s_add_u32 s44, s33, {Tx*4*8192}")
        for c in range(4):
            a(f"buffer_load_dwordx4 {v4(112+(Tx*4+c)*4)}, v5, s[24:27], s44 offen offset:{c*64}")
    for T in range(8):
        e0 = 32*(T >> 1) + 4*(T & 1)
        a(f"s_add_u32 s44, s38, {e0*4096}")
        a(f"buffer_load_dwordx4 {v4(144+4*T)}, v6, s[24:27], s44 offen")
        a(f"buffer_load_dwordx2 v[{176+2*T}:{177+2*T}], v7, s[24:27], s37 offen offset:{e0*16}")
    a("s_mov_b32 s54, 0x3db504f3")
    a("s_mov_b32 s55, 0x3fb8aa3b")
    a("s_mov_b32 s56, 0xff800000")
    a("s_waitcnt vmcnt(16)")
    for Tq in range(2):
        for Tk in range(3):
            acc = 192 + (Tq*3+Tk)*4
            for c in range(4):
                A = 96 + 4*c if Tk == 0 else 112 + ((Tk-1)*4+c)*4
                z = "0" if c == 0 else v4(acc)
                a(f"v_mfma_f32_16x16x32_bf16 {v4(acc)}, {v4(A)}, {v4(64+(Tq*4+c)*4)}, {z}")
    a("s_nop 7")
    a("v_lshlrev_b32 v21, 3, v17")
    a("v_sub_u32 v21, v16, v21")
    a("v_mov_b32 v100, s56")
    for Tq in range(2):
        b = 192 + Tq*12
        for i in range(0, 12, 2):
            a(f"v_cvt_pk_bf16_f32 v22, v{b+i}, v{b+1+i}")
            a(f"v_lshlrev_b32 v{b+i}, 16, v22")
            a(f"v_and_b32 v{b+1+i}, 0xffff0000, v22")
            a(f"v_mul_f32 v{b+i}, s54, v{b+i}")
            a(f"v_mul_f32 v{b+1+i}, s54, v{b+1+i}")
            a(f"v_cvt_pk_bf16_f32 v22, v{b+i}, v{b+1+i}")
            a(f"v_lshlrev_b32 v{b+i}, 16, v22")
            a(f"v_and_b32 v{b+1+i}, 0xffff0000, v22")
        for i in range(4):
            a(f"v_cndmask_b32 v{b+i}, v100, v{b+i}, s[42:43]")
        for Tx in range(2):
            for r in range(4):
                thr = 4*Tx + r - 16*Tq
                a(f"v_cmp_le_i32 vcc, {thr}, v21")
                a("s_nop 1")
                a(f"v_cndmask_b32 v{b+4+4*Tx+r}, v100, v{b+4+4*Tx+r}, vcc")
        a(f"v_max3_f32 v22, v{b}, v{b+1}, v{b+2}")
        for i in range(3, 11, 2):
            a(f"v_max3_f32 v22, v22, v{b+i}, v{b+i+1}")
        a(f"v_max_f32 v22, v22, v{b+11}")
        xrow_reduce(a, "v22", "v23", "v_max_f32")
        a("v_mul_f32 v22, s55, v22")
        for i in range(12):
            a(f"v_fma_f32 v{b+i}, v{b+i}, s55, -v22")
        for i in range(12):
            a(f"v_exp_f32 v{b+i}, v{b+i}")
        a("s_nop 0")
        a(f"v_add_f32 v22, v{b}, v{b+1}")
        for i in range(2, 12):
            a(f"v_add_f32 v22, v22, v{b+i}")
        xrow_reduce(a, "v22", "v23", "v_add_f32")
        a("v_rcp_f32 v22, v22")
        a("s_nop 0")
        for i in range(12):
            a(f"v_mul_f32 v{b+i}, v{b+i}, v22")
        for i in range(6):
            a(f"v_cvt_pk_bf16_f32 v{216+Tq*6+i}, v{b+2*i}, v{b+2*i+1}")
    a("s_waitcnt vmcnt(0)")
    a("s_nop 1")
    for Tq in range(2):
        pm = 216 + Tq*6; px = pm + 2
        for T in range(8):
            acc = 64 + (Tq*8+T)*4
            a(f"v_mfma_f32_16x16x32_bf16 {v4(acc)}, {v4(144+4*T)}, v[{px}:{px+3}], 0")
        for T in range(8):
            acc = 64 + (Tq*8+T)*4
            a(f"v_mfma_f32_16x16x16_bf16 {v4(acc)}, v[{176+2*T}:{177+2*T}], v[{pm}:{pm+1}], {v4(acc)}")
    a("s_nop 7")
    for Tq in range(2):
        a(f"s_add_u32 s44, s34, {Tq*16*8192}")
        for c in range(4):
            A0 = 64 + (Tq*8+2*c)*4; A1 = A0 + 4
            d = 192 + (Tq*4+c)*4
            a(f"v_cvt_pk_bf16_f32 v{d}, v{A0}, v{A0+1}")
            a(f"v_cvt_pk_bf16_f32 v{d+1}, v{A0+2}, v{A0+3}")
            a(f"v_cvt_pk_bf16_f32 v{d+2}, v{A1}, v{A1+1}")
            a(f"v_cvt_pk_bf16_f32 v{d+3}, v{A1+2}, v{A1+3}")
            a(f"buffer_store_dwordx4 {v4(d)}, v3, s[24:27], s44 offen offset:{c*64}")
    a("s_branch K4_END")
    a.label("K4_FFN2")
    a("s_sub_u32 s30, s2, 512")
    a("s_lshl_b32 s30, s30, 2")
    a("s_add_u32 s30, s30, s29")
    a("v_and_b32 v3, 7, v16")
    a("s_movk_i32 s31, 3584")
    a("v_mul_lo_u32 v3, v3, s31")
    a("v_lshl_add_u32 v3, v17, 4, v3")
    a("v_lshlrev_b32 v4, 4, v1")
    a("s_mul_i32 s32, s30, 114688")
    a(f"s_add_u32 s32, s32, 0x{WDP:x}")
    a("s_add_u32 s33, s32, 57344")
    a(f"s_mov_b32 s34, 0x{H_OFF:x}")
    for T in range(2):
        for r in range(4):
            a(f"v_mov_b32 v{40+4*T+r}, 0")
    a("s_mov_b32 s35, 0")
    a.label("K4_F2L")
    for u in range(4):
        a(f"buffer_load_dwordx4 {v4(64+12*u)}, v3, s[24:27], s34 offen offset:{u*64}")
        a(f"buffer_load_dwordx4 {v4(68+12*u)}, v4, s[24:27], s32 offen offset:{u*1024}")
        a(f"buffer_load_dwordx4 {v4(72+12*u)}, v4, s[24:27], s33 offen offset:{u*1024}")
    for u in range(4):
        a(f"s_waitcnt vmcnt({9-3*u})")
        a(f"v_mfma_f32_16x16x32_bf16 v[40:43], {v4(68+12*u)}, {v4(64+12*u)}, v[40:43]")
        a(f"v_mfma_f32_16x16x32_bf16 v[44:47], {v4(72+12*u)}, {v4(64+12*u)}, v[44:47]")
    a("s_add_u32 s34, s34, 256")
    a("s_add_u32 s32, s32, 4096")
    a("s_add_u32 s33, s33, 4096")
    a("s_add_u32 s35, s35, 1")
    a("s_cmp_lt_u32 s35, 14")
    a("s_cbranch_scc1 K4_F2L")
    a("v_and_b32 v5, 7, v16")
    a("v_lshlrev_b32 v5, 2, v5")
    a(f"s_mov_b32 s36, 0x{IDX_OFF+32:x}")
    a("buffer_load_dword v6, v5, s[24:27], s36 offen")
    a("s_mov_b32 s55, 0xbfb8aa3b")
    a("s_waitcnt vmcnt(0)")
    a("v_mul_f32 v6, s55, v6")
    a("v_exp_f32 v6, v6")
    a("s_nop 0")
    a("v_add_f32 v6, 1.0, v6")
    a("v_rcp_f32 v6, v6")
    a("s_nop 0")
    a("v_cvt_pk_bf16_f32 v6, v6, v6")
    a("v_lshlrev_b32 v6, 16, v6")
    for i in range(0, 8, 2):
        a(f"v_cvt_pk_bf16_f32 v7, v{40+i}, v{41+i}")
        a(f"v_lshlrev_b32 v8, 16, v7")
        a(f"v_and_b32 v9, 0xffff0000, v7")
        a("v_mul_f32 v8, v8, v6")
        a("v_mul_f32 v9, v9, v6")
        a(f"v_cvt_pk_bf16_f32 v{48+i//2}, v8, v9")
    a("v_lshlrev_b32 v5, 10, v16")
    a("v_lshl_add_u32 v5, v17, 4, v5")
    a("v_cndmask_b32 v5, v20, v5, s[40:41]")
    a("s_lshl_b32 s36, s30, 6")
    a(f"s_add_u32 s36, s36, 0x{UPD_OFF:x}")
    a("buffer_store_dwordx4 v[48:51], v5, s[24:27], s36 offen")
    a.label("K4_END")
    a("s_endpgm")
    return kernel_desc("k4_kernel", 232, 64, 232)
```

```python
from common import *
from proj import v4
K5_GRID = 128
def gen_k5(a):
    kernel_header(a, "k5_kernel")
    a("s_cmp_ge_u32 s2, 128")
    a("s_cbranch_scc1 K5_END")
    a("s_load_dwordx2 s[6:7], s[0:1], 112")
    a("s_load_dwordx2 s[4:5], s[0:1], 0")
    a("s_load_dwordx2 s[8:9], s[0:1], 96")
    a("v_lshrrev_b32 v2, 6, v0")
    a("v_and_b32 v1, 63, v0")
    a("s_nop 0")
    a("v_readfirstlane_b32 s29, v2")
    a("s_waitcnt lgkmcnt(0)")
    srd(a, 24, 6, WS_SIZE)
    srd(a, 16, 4, 2048*1024)
    srd(a, 20, 8, 2048*1024)
    a("v_and_b32 v16, 15, v1")
    a("v_lshrrev_b32 v17, 4, v1")
    a("s_and_b32 s30, s2, 3")
    a("s_lshr_b32 s31, s2, 2")
    a("s_and_b32 s32, s29, 1")
    a("s_lshr_b32 s33, s29, 1")
    a("s_lshl_b32 s30, s30, 1")
    a("s_add_u32 s30, s30, s32")
    a("s_lshl_b32 s31, s31, 1")
    a("s_add_u32 s31, s31, s33")
    a("v_lshlrev_b32 v3, 4, v1")
    a("s_lshl_b32 s34, s30, 19")
    a(f"s_add_u32 s34, s34, 0x{WOP:x}")
    for i in range(1, 4):
        a(f"s_add_u32 s{34+i}, s34, {i*0x20000}")
    a("v_lshlrev_b32 v4, 13, v16")
    a("v_lshl_add_u32 v4, v17, 4, v4")
    a("s_lshl_b32 s38, s31, 18")
    a(f"s_add_u32 s38, s38, 0x{O_OFF:x}")
    a(f"s_add_u32 s39, s38, {16*8192}")
    for i in range(32):
        a(f"v_mov_b32 v{32+i}, 0")
    def loads(buf, u):
        b = 64 + buf*48 + u*24
        for i in range(4):
            a(f"buffer_load_dwordx4 {v4(b+4*i)}, v3, s[24:27], s{34+i} offen offset:{u*1024}")
        for j in range(2):
            a(f"buffer_load_dwordx4 {v4(b+16+4*j)}, v4, s[24:27], s{38+j} offen offset:{u*64}")
    def adv():
        for i in range(4):
            a(f"s_add_u32 s{34+i}, s{34+i}, 2048")
        for j in range(2):
            a(f"s_add_u32 s{38+j}, s{38+j}, 128")
    def mf(buf, u):
        b = 64 + buf*48 + u*24
        for i in range(4):
            for j in range(2):
                acc = 32 + (i*2+j)*4
                a(f"v_mfma_f32_16x16x32_bf16 {v4(acc)}, {v4(b+4*i)}, {v4(b+16+4*j)}, {v4(acc)}")
    loads(0, 0); loads(0, 1); adv()
    a("s_mov_b32 s40, 0")
    a.label("K5_L")
    loads(1, 0); loads(1, 1); adv()
    a("s_waitcnt vmcnt(18)"); mf(0, 0)
    a("s_waitcnt vmcnt(12)"); mf(0, 1)
    loads(0, 0); loads(0, 1); adv()
    a("s_waitcnt vmcnt(18)"); mf(1, 0)
    a("s_waitcnt vmcnt(12)"); mf(1, 1)
    a("s_add_u32 s40, s40, 1")
    a("s_cmp_lt_u32 s40, 32")
    a("s_cbranch_scc1 K5_L")
    a("s_waitcnt vmcnt(0)")
    a(f"s_add_u32 s10, s6, 0x{IDX_OFF:x}")
    a("s_addc_u32 s11, s7, 0")
    a("s_load_dwordx8 s[44:51], s[10:11], 0")
    a("s_waitcnt lgkmcnt(0)")
    a("v_mov_b32 v20, 0x7ffffff0")
    for j in range(2):
        a("s_lshl_b32 s41, s31, 5")
        a(f"s_add_u32 s41, s41, {16*j}")
        a("v_add_u32 v5, s41, v16")
        a("v_mov_b32 v6, v20")
        for q in range(8):
            a(f"v_cmp_eq_u32 vcc, s{44+q}, v5")
            a(f"v_mov_b32 v7, {q*1024}")
            a("s_nop 0")
            a("v_cndmask_b32 v6, v6, v7, vcc")
        a("v_lshlrev_b32 v8, 4, v17")
        a("v_add_u32 v6, v6, v8")
        a("v_lshl_add_u32 v9, v5, 10, v8")
        for p in range(2):
            d0 = p*64
            a("s_lshl_b32 s42, s30, 7")
            a(f"s_add_u32 s42, s42, {d0}")
            a(f"s_add_u32 s43, s42, 0x{UPD_OFF:x}")
            a("buffer_load_dwordx4 v[64:67], v9, s[16:19], s42 offen")
            a("buffer_load_dwordx4 v[68:71], v9, s[24:27], s42 offen")
            a("buffer_load_dwordx4 v[72:75], v6, s[24:27], s43 offen")
            A0 = 32 + ((2*p)*2+j)*4; A1 = 32 + ((2*p+1)*2+j)*4
            for hh, A in enumerate((A0, A1)):
                a(f"v_cvt_pk_bf16_f32 v{76+2*hh}, v{A}, v{A+1}")
                a(f"v_cvt_pk_bf16_f32 v{77+2*hh}, v{A+2}, v{A+3}")
            a("s_waitcnt vmcnt(0)")
            for w in range(4):
                a(f"v_lshlrev_b32 v80, 16, v{76+w}")
                a(f"v_and_b32 v81, 0xffff0000, v{76+w}")
                a(f"v_lshlrev_b32 v82, 16, v{64+w}")
                a(f"v_and_b32 v83, 0xffff0000, v{64+w}")
                a("v_add_f32 v80, v82, v80")
                a("v_add_f32 v81, v83, v81")
                a("v_cvt_pk_bf16_f32 v84, v80, v81")
                a(f"v_lshlrev_b32 v80, 16, v{68+w}")
                a(f"v_and_b32 v81, 0xffff0000, v{68+w}")
                a(f"v_lshlrev_b32 v82, 16, v{72+w}")
                a(f"v_and_b32 v83, 0xffff0000, v{72+w}")
                a("v_add_f32 v80, v80, v82")
                a("v_add_f32 v81, v81, v83")
                a("v_cvt_pk_bf16_f32 v85, v80, v81")
                a("v_lshlrev_b32 v80, 16, v84")
                a("v_and_b32 v81, 0xffff0000, v84")
                a("v_lshlrev_b32 v82, 16, v85")
                a("v_and_b32 v83, 0xffff0000, v85")
                a("v_add_f32 v80, v80, v82")
                a("v_add_f32 v81, v81, v83")
                a(f"v_cvt_pk_bf16_f32 v{88+w}, v80, v81")
            a("buffer_store_dwordx4 v[88:91], v9, s[20:23], s42 offen")
            a("s_nop 1")
    a.label("K5_END")
    a("s_endpgm")
    return kernel_desc("k5_kernel", 160, 64, 160)
```

```python
from common import *
ACCQ = [40, 44]; ACCK = [48, 52]; ACCV = [56, 60]
def wq(T, c): r = (T*16+c)*4; return f"a[{r}:{r+3}]"
def wk(T, c): r = 128 + (T*16+c)*4; return f"a[{r}:{r+3}]"
def wv(T, c): r = 128 + (T*16+c)*4; return f"v[{r}:{r+3}]"
def tokf(c): r = 64 + 4*c; return f"v[{r}:{r+3}]"
def v4(r): return f"v[{r}:{r+3}]"

def load_qkv_weights(a, ws, voff, s_h, s_w, st0, st1):
    a(f"s_lshl_b32 s{st0}, s{s_h}, 3")
    a(f"s_lshl_b32 s{st1}, s{s_w}, 1")
    a(f"s_add_u32 s{st0}, s{st0}, s{st1}")
    a(f"s_lshl_b32 s{st0}, s{st0}, 14")
    for (base, f) in ((WQP, wq), (WKP, wk), (WVP, wv)):
        a(f"s_add_u32 s{st1}, s{st0}, 0x{base:x}")
        for T in range(2):
            for c in range(16):
                i = T*16 + c
                a(f"buffer_load_dwordx4 {f(T,c)}, {voff}, s[{ws}:{ws+3}], s{st1} offen offset:{(i%4)*1024}")
                if i % 4 == 3:
                    a(f"s_add_u32 s{st1}, s{st1}, 4096")

def proj_step(a, c):
    for T in range(2):
        z = "0" if c == 0 else v4(ACCQ[T])
        a(f"v_mfma_f32_16x16x32_bf16 {v4(ACCQ[T])}, {wq(T,c)}, {tokf(c)}, {z}")
    for T in range(2):
        z = "0" if c == 0 else v4(ACCK[T])
        a(f"v_mfma_f32_16x16x32_bf16 {v4(ACCK[T])}, {wk(T,c)}, {tokf(c)}, {z}")
    for T in range(2):
        z = "0" if c == 0 else v4(ACCV[T])
        a(f"v_mfma_f32_16x16x32_bf16 {v4(ACCV[T])}, {tokf(c)}, {wv(T,c)}, {z}")
```

```python
import sys
from common import *
import k1, k2, k4, k5
import k3b as k3
def main(out):
    a = Asm()
    launches = []
    descs = []
    descs.append(k1.gen_k1(a))
    launches.append(f"; @launch kernel=k1_kernel grid=({k1.K1_GRID},1,1) block=(256,1,1) lds={k1.K1_LDS}")
    descs.append(k2.gen_k2(a))
    launches.append(f"; @launch kernel=k2_kernel grid=({k2.K2_GRID},1,1) block=(256,1,1) lds=0")
    descs.append(k3.gen_k3(a))
    launches.append(f"; @launch kernel=k3_kernel grid=({k3.K3_GRID},1,1) block=(256,1,1) lds={k3.K3_LDS}")
    descs.append(k4.gen_k4(a))
    launches.append(f"; @launch kernel=k4_kernel grid=({k4.K4_GRID},1,1) block=(256,1,1) lds=0")
    descs.append(k5.gen_k5(a))
    launches.append(f"; @launch kernel=k5_kernel grid=({k5.K5_GRID},1,1) block=(256,1,1) lds=0")
    hdr = "\n".join(launches) + "\n"
    s = hdr + '.amdgcn_target "amdgcn-amd-amdhsa--gfx950"\n.text\n' + a.text() + '.section .rodata,"a"\n'
    for d in descs:
        s += ".p2align 6\n" + d
    open(out, "w").write(s)
if __name__ == "__main__":
    if 'stamp' in sys.argv: k3.STAMP = True
    if "forceglobal" in sys.argv: k3.ELECT_N = 40
    main(sys.argv[1])
```

```python
from common import *
from proj import wq, wk, v4
K3_GRID = 256
ELECT_N = 32
ELECT_SPIN = 4096
LDS_MEM = 0
LDS_SC = 8192
LDS_O = 14336
LDS_WV = 18432
K3_LDS = 18432 + 131072
SPIN_MAX = 0x40000
STAMP = False
SAMEXCD = False
ROUND_EMU = True
DBG_OFF = 0x8000000
ACCQ = [56, 60]; ACCK = [64, 68]; ACCV = [72, 76]
def wo(i, c): r = 128 + (i*4+c)*4; return f"v[{r}:{r+3}]"

def stamp(a, i):
    if not STAMP: return
    a("s_memtime s[60:61]")
    a("s_waitcnt lgkmcnt(0)")
    a("v_mov_b32 v14, s60")
    a("s_lshl_b32 s62, s30, 6")
    a("s_lshl_b32 s63, s28, 14")
    a("s_add_u32 s62, s62, s63")
    a("s_lshl_b32 s63, s29, 12")
    a("s_add_u32 s62, s62, s63")
    a(f"s_add_u32 s62, s62, 0x{DBG_OFF + 4*i:x}")
    a("v_mov_b32 v15, 0")
    a("buffer_store_dword v14, v15, s[24:27], s62 offen")

class Em:
    def __init__(self, a):
        self.a = a; self.n = 0; self.tags = {}; self.done = 0
    def reset(self):
        self.n = 0; self.tags = {}; self.done = 0
    def run(self, items):
        for it in items:
            k = it[0]
            if k == 'i': self.a(it[1])
            elif k == 'ds':
                self.a(it[1]); self.n += 1
                if len(it) > 2: self.tags[it[2]] = self.n
            elif k == 'need':
                idx = self.tags[it[1]]
                if idx > self.done:
                    cnt = self.n - idx
                    self.a(f"s_waitcnt lgkmcnt({min(cnt, 15)})")
                    self.done = idx if cnt <= 15 else self.n - 15
            elif k == 'drain':
                self.a("s_waitcnt lgkmcnt(0)"); self.done = self.n
            else: raise ValueError(k)

def merge(main, fill, ratio):
    out = []; fi = 0; cnt = 0
    for it in main:
        out.append(it)
        cnt += 1
        if cnt >= ratio and fi < len(fill):
            out.extend(fill[fi]); fi += 1; cnt = 0
    while fi < len(fill):
        out.extend(fill[fi]); fi += 1
    return out

def election(a):
    a("s_cmp_ge_u32 s2, 256")
    a("s_cbranch_scc1 K3_END")
    a("s_load_dwordx2 s[8:9], s[0:1], 104")
    a("s_getreg_b32 s3, hwreg(HW_REG_XCC_ID, 0, 4)")
    a("v_lshrrev_b32 v96, 6, v0")
    a("s_nop 0")
    a("v_readfirstlane_b32 s29, v96")
    a("s_waitcnt lgkmcnt(0)")
    srd(a, 12, 8, 256)
    a(f"v_mov_b32 v4, {LDS_SC}")
    a("s_cmp_lg_u32 s29, 0")
    a("s_cbranch_scc1 K3_EL_WAIT")
    a("s_mov_b64 exec, 1")
    a("s_and_b32 s3, s3, 7")
    a("s_lshl_b32 s11, s3, 2")
    a("v_mov_b32 v1, 1")
    a("v_mov_b32 v2, 0")
    a("buffer_atomic_add v1, v2, s[12:15], s11 offen sc0 sc1")
    a("s_waitcnt vmcnt(0)")
    a("v_readfirstlane_b32 s16, v1")
    a("s_mov_b32 s17, -1")
    a("s_mov_b32 s10, 0")
    a(f"s_cmp_ge_u32 s16, {ELECT_N}")
    a("s_cbranch_scc1 K3_EL_DONE")
    a("s_add_u32 s18, s3, 1")
    a(f"s_cmp_lg_u32 s16, {ELECT_N-1}")
    a("s_cbranch_scc1 K3_EL_POLL0")
    a("v_mov_b32 v6, s18")
    a("v_mov_b32 v7, 0")
    a("buffer_atomic_cmpswap v[6:7], v2, s[12:15], 0 offen offset:64 sc0 sc1")
    a("s_waitcnt vmcnt(0)")
    a.label("K3_EL_POLL0")
    a("s_mov_b32 s31, 0")
    a.label("K3_EL_POLL")
    a("buffer_load_dword v6, v2, s[12:15], 0 offen offset:64 sc0 sc1")
    a("s_waitcnt vmcnt(0)")
    a("v_readfirstlane_b32 s19, v6")
    a("s_cmp_lg_u32 s19, 0")
    a("s_cbranch_scc1 K3_EL_GOT")
    a("s_add_u32 s31, s31, 1")
    a(f"s_cmp_lt_u32 s31, {ELECT_SPIN}")
    a("s_cbranch_scc1 K3_EL_POLL")
    a("v_mov_b32 v6, 0xff")
    a("v_mov_b32 v7, 0")
    a("buffer_atomic_cmpswap v[6:7], v2, s[12:15], 0 offen offset:64 sc0 sc1")
    a("s_waitcnt vmcnt(0)")
    a("s_branch K3_EL_POLL0")
    a.label("K3_EL_GOT")
    a("s_cmp_eq_u32 s19, 0xff")
    a("s_cbranch_scc1 K3_EL_GLOBAL")
    a("s_cmp_lg_u32 s19, s18")
    a("s_cbranch_scc1 K3_EL_DONE")
    a("s_mov_b32 s17, s16")
    a("s_branch K3_EL_DONE")
    a.label("K3_EL_GLOBAL")
    a("v_mov_b32 v1, 1")
    a("buffer_atomic_add v1, v2, s[12:15], 0 offen offset:128 sc0 sc1")
    a("s_waitcnt vmcnt(0)")
    a("v_readfirstlane_b32 s16, v1")
    a("s_mov_b32 s10, 1")
    a("s_cmp_ge_u32 s16, 32")
    a("s_cbranch_scc1 K3_EL_DONE")
    a("s_mov_b32 s17, s16")
    a.label("K3_EL_DONE")
    a("v_mov_b32 v6, s17")
    a("v_mov_b32 v7, s10")
    a("ds_write_b64 v4, v[6:7]")
    a("s_waitcnt lgkmcnt(0)")
    a("s_mov_b64 exec, -1")
    a.label("K3_EL_WAIT")
    a("s_barrier")
    a("ds_read_b64 v[6:7], v4")
    a("s_waitcnt lgkmcnt(0)")
    a("v_readfirstlane_b32 s28, v6")
    a("v_readfirstlane_b32 s10, v7")
    a("s_cmp_eq_u32 s28, -1")
    a("s_cbranch_scc1 K3_END")

def gen_k3(a):
    kernel_header(a, "k3_kernel")
    election(a)
    a("s_load_dwordx2 s[6:7], s[0:1], 112")
    a("s_load_dwordx2 s[4:5], s[0:1], 8")
    a("v_lshrrev_b32 v96, 6, v0")
    a("v_and_b32 v97, 63, v0")
    a("s_nop 0")
    a("v_readfirstlane_b32 s29, v96")
    a("s_waitcnt lgkmcnt(0)")
    srd(a, 24, 6, WS_SIZE)
    srd(a, 20, 4, 8192)
    a("v_lshlrev_b32 v98, 4, v97")
    a("v_lshl_add_u32 v2, v96, 15, v98")
    a(f"v_add_u32 v2, 0x{LDS_WV:x}, v2")
    a("s_lshl_b32 s32, s28, 3")
    a("s_lshl_b32 s33, s29, 1")
    a("s_add_u32 s32, s32, s33")
    a("s_lshl_b32 s32, s32, 14")
    a(f"s_add_u32 s33, s32, 0x{WVP:x}")
    for i in range(32):
        r = 128 + 4*i
        a(f"buffer_load_dwordx4 v[{r}:{r+3}], v98, s[24:27], s33 offen offset:{(i%4)*1024}")
        if i % 4 == 3:
            a("s_add_u32 s33, s33, 4096")
    for i in range(32):
        r = 128 + 4*i
        a(f"s_waitcnt vmcnt({31-i})")
        a(f"ds_write_b128 v2, v[{r}:{r+3}] offset:{i*1024}")
    a("s_waitcnt lgkmcnt(0)")
    for (base, f) in ((WQP, wq), (WKP, wk)):
        a(f"s_add_u32 s33, s32, 0x{base:x}")
        for T in range(2):
            for c in range(16):
                i = T*16 + c
                a(f"buffer_load_dwordx4 {f(T,c)}, v98, s[24:27], s33 offen offset:{(i%4)*1024}")
                if i % 4 == 3:
                    a("s_add_u32 s33, s33, 4096")
    a("s_lshl_b32 s32, s29, 20")
    a("s_lshl_b32 s33, s28, 12")
    a("s_add_u32 s32, s32, s33")
    a(f"s_add_u32 s32, s32, 0x{WOP:x}")
    for i in range(8):
        for c in range(4):
            a(f"buffer_load_dwordx4 {wo(i,c)}, v98, s[24:27], s32 offen offset:{c*1024}")
        a("s_add_u32 s32, s32, 0x20000")
    a("v_and_b32 v100, 15, v97")
    a("v_lshrrev_b32 v101, 4, v97")
    a("v_lshrrev_b32 v102, 2, v100")
    a("v_and_b32 v103, 3, v100")
    a("v_lshl_add_u32 v102, v102, 3, v103")
    a("v_mov_b32 v104, 0x7ffffff0")
    a("v_cmp_gt_u32 s[40:41], 8, v100")
    a("v_cmp_gt_u32 s[42:43], 2, v101")
    a("v_cmp_gt_u32 s[44:45], 8, v97")
    a("v_lshl_add_u32 v0, v96, 11, v98")
    a("v_and_b32 v105, 7, v100")
    a("v_lshl_add_u32 v1, v105, 2, v101")
    a("v_lshlrev_b32 v1, 4, v1")
    a("v_lshl_add_u32 v3, v96, 12, v98")
    a("s_movk_i32 s32, 1536")
    a("v_mul_lo_u32 v4, v96, s32")
    a("v_lshl_add_u32 v106, v101, 3, v105")
    a("v_lshl_add_u32 v4, v106, 4, v4")
    a(f"v_add_u32 v4, {LDS_SC}, v4")
    a("v_lshrrev_b32 v107, 3, v100")
    a("s_movk_i32 s32, 3072")
    a("v_mul_lo_u32 v9, v107, s32")
    a("v_lshl_add_u32 v9, v106, 4, v9")
    a(f"v_add_u32 v9, {LDS_SC}, v9")
    a("v_lshlrev_b32 v5, 13, v102")
    a("v_lshl_add_u32 v5, v96, 6, v5")
    a("v_lshl_add_u32 v5, v101, 4, v5")
    a("v_lshl_add_u32 v6, v96, 5, v102")
    a("v_lshlrev_b32 v6, 12, v6")
    a("v_lshl_add_u32 v6, v101, 4, v6")
    a("v_lshlrev_b32 v7, 13, v100")
    a("v_lshl_add_u32 v7, v96, 6, v7")
    a("v_lshl_add_u32 v7, v101, 4, v7")
    a("v_cndmask_b32 v7, v104, v7, s[40:41]")
    a("v_lshl_add_u32 v8, v96, 5, v102")
    a("v_lshlrev_b32 v8, 4, v8")
    a("v_lshl_add_u32 v8, v101, 3, v8")
    a("v_cndmask_b32 v8, v104, v8, s[42:43]")
    a("v_lshlrev_b32 v11, 8, v100")
    a("v_lshl_add_u32 v11, v101, 4, v11")
    a(f"v_add_u32 v11, {LDS_O}, v11")
    a("v_lshl_add_u32 v10, v96, 6, v11")
    a("v_lshlrev_b32 v12, 17, v96")
    a("v_lshrrev_b32 v103, 1, v100")
    a("v_lshl_add_u32 v12, v103, 12, v12")
    a("v_and_b32 v103, 1, v100")
    a("v_lshl_add_u32 v12, v103, 6, v12")
    a("v_lshl_add_u32 v12, v101, 4, v12")
    a("v_cndmask_b32 v12, v104, v12, s[40:41]")
    a("v_lshl_add_u32 v13, v96, 7, v98")
    a("v_cndmask_b32 v13, v104, v13, s[44:45]")
    a("v_bfe_u32 v103, v97, 2, 3")
    a("v_lshlrev_b32 v103, 10, v103")
    a("v_and_b32 v105, 3, v97")
    a("v_lshl_add_u32 v103, v105, 4, v103")
    a("v_lshrrev_b32 v105, 5, v97")
    a("v_lshl_add_u32 v105, v96, 2, v105")
    a("v_lshl_add_u32 v103, v105, 6, v103")
    a("buffer_load_dwordx4 v[16:19], v103, s[20:23], 0 offen")
    a("buffer_load_dwordx4 v[20:23], v103, s[20:23], 0 offen offset:128")
    a("s_mov_b32 s30, 0")
    a("s_lshl_b32 s46, s28, 8")
    a(f"s_add_u32 s47, s46, 0x{K_OFF:x}")
    a("s_lshl_b32 s48, s28, 19")
    a(f"s_add_u32 s48, s48, 0x{VT_OFF:x}")
    a(f"s_add_u32 s49, s46, 0x{KM_OFF:x}")
    a("s_lshl_b32 s50, s28, 11")
    a(f"s_add_u32 s50, s50, 0x{VMT_OFF:x}")
    a(f"s_mov_b32 s51, 0x{MEMBUF_OFF:x}")
    a("s_lshr_b32 s52, s28, 1")
    a("s_lshl_b32 s52, s52, 9")
    a("s_and_b32 s53, s28, 1")
    a("s_lshl_b32 s53, s53, 3")
    a("s_add_u32 s52, s52, s53")
    a("s_mov_b32 s54, 0x3db504f3")
    a("s_mov_b32 s55, 0x3fb8aa3b")
    a("s_mov_b32 s56, 0xff800000")
    a("s_mov_b64 s[36:37], exec")
    a("buffer_load_dwordx4 v[80:83], v5, s[24:27], s47 offen")
    a("s_add_u32 s32, s47, 32768")
    a("buffer_load_dwordx4 v[84:87], v5, s[24:27], s32 offen")
    a("buffer_load_dwordx4 v[88:91], v6, s[24:27], s48 offen")
    a("s_add_u32 s32, s48, 16384")
    a("buffer_load_dwordx4 v[92:95], v6, s[24:27], s32 offen")
    a("s_waitcnt vmcnt(0)")
    a("ds_write_b128 v0, v[16:19]")
    a("ds_write_b128 v0, v[20:23] offset:1024")
    a("s_waitcnt lgkmcnt(0)")
    a("s_barrier")
    a("s_cmp_eq_u32 s10, 0")
    a("s_cbranch_scc1 K3_PROJ_A")
    a("s_branch K3_PROJ_B")
    gen_loop(a, "", "_A")
    gen_loop(a, " sc1", "_B")
    a.label("K3_END")
    a("s_endpgm")
    return kernel_desc("k3_kernel", 512, 72, 256)

def gen_loop(a, ST, SFX):
    a.label(f"K3_STEP{SFX}")
    stamp(a, 0)
    a("s_mov_b32 s31, 0")
    a.label(f"K3_POLLM_L{SFX}")
    a("buffer_load_dwordx4 v[16:19], v0, s[24:27], s51 offen sc1")
    a("buffer_load_dwordx4 v[20:23], v0, s[24:27], s51 offen offset:1024 sc1")
    a("s_waitcnt vmcnt(0)")
    a("v_max3_u32 v14, v16, v17, v18")
    a("v_max3_u32 v14, v14, v19, v20")
    a("v_max3_u32 v14, v14, v21, v22")
    a("v_max_u32 v14, v14, v23")
    a("v_cmp_eq_u32 vcc, -1, v14")
    a("s_add_u32 s31, s31, 1")
    a(f"s_cmp_gt_u32 s31, 0x{SPIN_MAX:x}")
    a("s_cbranch_scc1 K3_END")
    a(f"s_cbranch_vccnz K3_POLLM_L{SFX}")
    a("ds_write_b128 v0, v[16:19]")
    a("ds_write_b128 v0, v[20:23] offset:1024")
    a("s_waitcnt lgkmcnt(0)")
    a("s_barrier")
    a.label(f"K3_PROJ{SFX}")
    stamp(a, 1)
    em = Em(a)
    I = lambda s: ('i', s)
    items = []
    def mreg(c): return 16 + 4*(c % 4)
    def treg(c, k): return 32 + 12*(c % 2) + 4*k
    for c in range(4):
        items.append(('ds', f"ds_read_b128 {v4(mreg(c))}, v1 offset:{c*512}", ('m', c)))
    for c in range(16):
        items.append(('need', ('m', c)))
        for T in range(2):
            z = "0" if c == 0 else v4(ACCQ[T])
            items.append(I(f"v_mfma_f32_16x16x32_bf16 {v4(ACCQ[T])}, {wq(T,c)}, {v4(mreg(c))}, {z}"))
        for T in range(2):
            z = "0" if c == 0 else v4(ACCK[T])
            items.append(I(f"v_mfma_f32_16x16x32_bf16 {v4(ACCK[T])}, {wk(T,c)}, {v4(mreg(c))}, {z}"))
        if c + 4 < 16:
            items.append(('ds', f"ds_read_b128 {v4(mreg(c+4))}, v1 offset:{(c+4)*512}", ('m', c+4)))
        if c in (12, 13):
            cc = c - 12
            items.append(('ds', f"ds_read_b128 {v4(treg(cc,0))}, v1 offset:{cc*512}"))
            items.append(('ds', f"ds_read_b128 {v4(treg(cc,1))}, v2 offset:{cc*1024}"))
            items.append(('ds', f"ds_read_b128 {v4(treg(cc,2))}, v2 offset:{(16+cc)*1024}", ('t', cc)))
    em.run(items)
    stamp(a, 2)
    F = []
    for c in range(16):
        g = [('need', ('t', c))]
        for T in range(2):
            z = "0" if c == 0 else v4(ACCV[T])
            g.append(I(f"v_mfma_f32_16x16x32_bf16 {v4(ACCV[T])}, {v4(treg(c,0))}, {v4(treg(c,1+T))}, {z}"))
        F.append(g)
        if c + 2 < 16:
            cc = c + 2
            F.append([('ds', f"ds_read_b128 {v4(treg(cc,0))}, v1 offset:{cc*512}"),
                      ('ds', f"ds_read_b128 {v4(treg(cc,1))}, v2 offset:{cc*1024}"),
                      ('ds', f"ds_read_b128 {v4(treg(cc,2))}, v2 offset:{(16+cc)*1024}", ('t', cc))])
    M = []
    pre = F[0] + F[1] + F[2] + F[3]
    Frest = F[4:]
    M.append(I("s_nop 1"))
    M.append(I(f"v_cvt_pk_bf16_f32 v96, v{ACCQ[0]}, v{ACCQ[0]+1}"))
    M.append(I(f"v_cvt_pk_bf16_f32 v97, v{ACCQ[0]+2}, v{ACCQ[0]+3}"))
    M.append(I(f"v_cvt_pk_bf16_f32 v98, v{ACCQ[1]}, v{ACCQ[1]+1}"))
    M.append(I(f"v_cvt_pk_bf16_f32 v99, v{ACCQ[1]+2}, v{ACCQ[1]+3}"))
    M.append(I(f"v_cvt_pk_bf16_f32 v100, v{ACCK[0]}, v{ACCK[0]+1}"))
    M.append(I(f"v_cvt_pk_bf16_f32 v101, v{ACCK[0]+2}, v{ACCK[0]+3}"))
    M.append(I(f"v_cvt_pk_bf16_f32 v102, v{ACCK[1]}, v{ACCK[1]+1}"))
    M.append(I(f"v_cvt_pk_bf16_f32 v103, v{ACCK[1]+2}, v{ACCK[1]+3}"))
    M.append(I("s_nop 1"))
    M.append(I("v_mfma_f32_16x16x32_bf16 v[104:107], v[100:103], v[96:99], 0"))
    M.append(I("v_mfma_f32_16x16x32_bf16 v[108:111], v[80:83], v[96:99], 0"))
    M.append(I("v_mfma_f32_16x16x32_bf16 v[112:115], v[84:87], v[96:99], 0"))
    M.append(I("buffer_store_dwordx4 v[100:103], v7, s[24:27], s49 offen"))
    M.append(I("s_add_u32 s47, s47, 0x40000"))
    M.append(I("buffer_load_dwordx4 v[80:83], v5, s[24:27], s47 offen"))
    M.append(I("s_add_u32 s32, s47, 32768"))
    M.append(I("buffer_load_dwordx4 v[84:87], v5, s[24:27], s32 offen"))
    M.append(I("s_nop 3"))
    M.append(I("s_mov_b64 exec, s[40:41]"))
    M.append(('ds', "ds_write_b128 v4, v[104:107]"))
    M.append(('ds', "ds_write_b128 v4, v[108:111] offset:512"))
    M.append(('ds', "ds_write_b128 v4, v[112:115] offset:1024"))
    M.append(I("s_mov_b64 exec, s[36:37]"))
    M.append(('drain',))
    M.append(I("s_barrier"))
    for t in range(3):
        M.append(('ds', f"ds_read_b128 v[{116+4*t}:{119+4*t}], v9 offset:{t*512}"))
    for t in range(3):
        M.append(('ds', f"ds_read_b128 v[{56+4*t}:{59+4*t}], v9 offset:{1536+t*512}", ('sc', t)))
    M.append(('need', ('sc', 2)))
    for i in range(0, 12, 2):
        M.append(I(f"v_pk_add_f32 v[{104+i}:{105+i}], v[{116+i}:{117+i}], v[{56+i}:{57+i}]"))
    M.append(I("s_nop 0"))
    for i in range(12):
        M.append(I(f"v_add_f32_dpp v{116+i}, v{104+i}, v{104+i} row_ror:8 row_mask:0xf bank_mask:0xf"))
    b = 116
    if ROUND_EMU:
        for i in range(0, 12, 2):
            M.append(I(f"v_cvt_pk_bf16_f32 v{104+i//2}, v{b+i}, v{b+1+i}"))
        for i in range(0, 12, 2):
            M.append(I(f"v_lshlrev_b32 v{b+i}, 16, v{104+i//2}"))
            M.append(I(f"v_and_b32 v{b+1+i}, 0xffff0000, v{104+i//2}"))
        for i in range(12):
            M.append(I(f"v_mul_f32 v{b+i}, s54, v{b+i}"))
        for i in range(0, 12, 2):
            M.append(I(f"v_cvt_pk_bf16_f32 v{104+i//2}, v{b+i}, v{b+1+i}"))
        for i in range(0, 12, 2):
            M.append(I(f"v_lshlrev_b32 v{b+i}, 16, v{104+i//2}"))
            M.append(I(f"v_and_b32 v{b+1+i}, 0xffff0000, v{104+i//2}"))
    else:
        for i in range(12):
            M.append(I(f"v_mul_f32 v{b+i}, s54, v{b+i}"))
    M.append(I("v_mov_b32 v14, s56"))
    for i in range(4):
        M.append(I(f"v_cndmask_b32 v{b+i}, v14, v{b+i}, s[42:43]"))
    M.append(I(f"v_max3_f32 v14, v{b}, v{b+1}, v{b+2}"))
    M.append(I(f"v_max3_f32 v15, v{b+3}, v{b+4}, v{b+5}"))
    M.append(I(f"v_max3_f32 v14, v14, v{b+6}, v{b+7}"))
    M.append(I(f"v_max3_f32 v15, v15, v{b+8}, v{b+9}"))
    M.append(I(f"v_max3_f32 v14, v14, v{b+10}, v{b+11}"))
    M.append(I("v_max_f32 v14, v14, v15"))
    def xrow(v, t, op):
        M.append(I(f"v_mov_b32 {t}, {v}"))
        M.append(I("s_nop 1"))
        M.append(I(f"v_permlane16_swap_b32 {v}, {t}"))
        M.append(I("s_nop 1"))
        M.append(I(f"{op} {v}, {v}, {t}"))
        M.append(I(f"v_mov_b32 {t}, {v}"))
        M.append(I("s_nop 1"))
        M.append(I(f"v_permlane32_swap_b32 {v}, {t}"))
        M.append(I("s_nop 1"))
        M.append(I(f"{op} {v}, {v}, {t}"))
    xrow("v14", "v15", "v_max_f32")
    M.append(I("v_mul_f32 v14, s55, v14"))
    for i in range(12):
        M.append(I(f"v_fma_f32 v{b+i}, v{b+i}, s55, -v14"))
    for i in range(12):
        M.append(I(f"v_exp_f32 v{b+i}, v{b+i}"))
    M.append(I("s_nop 0"))
    M.append(I(f"v_add_f32 v14, v{b}, v{b+1}"))
    M.append(I(f"v_add_f32 v15, v{b+2}, v{b+3}"))
    for i in range(4, 12, 2):
        M.append(I(f"v_add_f32 v14, v14, v{b+i}"))
        M.append(I(f"v_add_f32 v15, v15, v{b+i+1}"))
    M.append(I("v_add_f32 v14, v14, v15"))
    xrow("v14", "v15", "v_add_f32")
    M.append(I("v_rcp_f32 v14, v14"))
    M.append(I("s_nop 0"))
    for i in range(12):
        M.append(I(f"v_mul_f32 v{b+i}, v{b+i}, v14"))
    for i in range(6):
        M.append(I(f"v_cvt_pk_bf16_f32 v{104+i}, v{b+2*i}, v{b+2*i+1}"))
    em.run(pre + merge(M, Frest, 4))
    stamp(a, 4)
    a("s_nop 7")
    a(f"v_cvt_pk_bf16_f32 v110, v{ACCV[0]}, v{ACCV[0]+1}")
    a(f"v_cvt_pk_bf16_f32 v111, v{ACCV[0]+2}, v{ACCV[0]+3}")
    a(f"v_cvt_pk_bf16_f32 v112, v{ACCV[1]}, v{ACCV[1]+1}")
    a(f"v_cvt_pk_bf16_f32 v113, v{ACCV[1]+2}, v{ACCV[1]+3}")
    a("v_mfma_f32_16x16x32_bf16 v[96:99], v[88:91], v[106:109], 0")
    a("v_mfma_f32_16x16x32_bf16 v[100:103], v[92:95], v[106:109], 0")
    a("v_mfma_f32_16x16x16_bf16 v[96:99], v[110:111], v[104:105], v[96:99]")
    a("v_mfma_f32_16x16x16_bf16 v[100:103], v[112:113], v[104:105], v[100:103]")
    a("buffer_store_dwordx2 v[110:111], v8, s[24:27], s50 offen")
    a("buffer_store_dwordx2 v[112:113], v8, s[24:27], s50 offen offset:64")
    a("s_cmp_eq_u32 s30, 63")
    a("s_cbranch_scc1 K3_END")
    a("s_add_u32 s48, s48, 64")
    a("buffer_load_dwordx4 v[88:91], v6, s[24:27], s48 offen")
    a("s_add_u32 s32, s48, 16384")
    a("buffer_load_dwordx4 v[92:95], v6, s[24:27], s32 offen")
    a("s_nop 0")
    a("v_cvt_pk_bf16_f32 v116, v96, v97")
    a("v_cvt_pk_bf16_f32 v117, v98, v99")
    a("v_cvt_pk_bf16_f32 v118, v100, v101")
    a("v_cvt_pk_bf16_f32 v119, v102, v103")
    a("ds_write_b128 v10, v[116:119]")
    a("s_waitcnt lgkmcnt(0)")
    a("s_barrier")
    for c in range(4):
        a(f"ds_read_b128 {v4(16+4*c)}, v11 offset:{c*64}")
    for c in range(4):
        a(f"s_waitcnt lgkmcnt({3-c})")
        for i in range(8):
            acc = 32 + 4*i
            z = "0" if c == 0 else v4(acc)
            a(f"v_mfma_f32_16x16x32_bf16 {v4(acc)}, {wo(i,c)}, {v4(16+4*c)}, {z}")
    stamp(a, 5)
    a("s_and_b32 s32, s30, 1")
    a("s_lshl_b32 s32, s32, 19")
    a("s_lshl_b32 s33, s28, 7")
    a("s_add_u32 s57, s32, s33")
    a(f"s_add_u32 s57, s57, 0x{PART_OFF:x}")
    a("s_nop 0")
    for i in range(8):
        acc = 32 + 4*i
        a(f"buffer_store_dwordx4 {v4(acc)}, v12, s[24:27], s57 offen{ST}")
        if i < 7:
            a("s_add_u32 s57, s57, 16384")
    stamp(a, 6)
    a("s_add_u32 s51, s51, 8192")
    a("s_lshl_b32 s33, s28, 14")
    a("s_add_u32 s57, s32, s33")
    a(f"s_add_u32 s57, s57, 0x{PART_OFF:x}")
    a("s_mov_b32 s31, 0")
    a.label(f"K3_POLLP{SFX}")
    for i in range(4):
        a(f"buffer_load_dwordx4 v[{96+4*i}:{99+4*i}], v3, s[24:27], s57 offen offset:{i*1024} sc1")
    a("s_waitcnt vmcnt(0)")
    a("v_max3_u32 v14, v96, v97, v98")
    for i in range(99, 111, 2):
        a(f"v_max3_u32 v14, v14, v{i}, v{i+1}")
    a("v_max_u32 v14, v14, v111")
    a("v_cmp_eq_u32 vcc, -1, v14")
    a("s_add_u32 s31, s31, 1")
    a(f"s_cmp_gt_u32 s31, 0x{SPIN_MAX:x}")
    a("s_cbranch_scc1 K3_END")
    a(f"s_cbranch_vccnz K3_POLLP{SFX}")
    stamp(a, 7)
    for r in range(4):
        a(f"v_add_f32 v{96+r}, v{96+r}, v{100+r}")
        a(f"v_add_f32 v{104+r}, v{104+r}, v{108+r}")
    for r in range(4):
        a(f"v_add_f32 v{96+r}, v{96+r}, v{104+r}")
    a("s_nop 1")
    for r in range(4):
        a(f"v_add_f32_dpp v{100+r}, v{96+r}, v{96+r} row_ror:8 row_mask:0xf bank_mask:0xf")
    for r in range(4):
        a(f"v_mov_b32 v{96+r}, v{100+r}")
    a("s_nop 1")
    for r in range(4):
        a(f"v_permlane16_swap_b32 v{96+r}, v{100+r}")
    a("s_nop 1")
    for r in range(4):
        a(f"v_add_f32 v{96+r}, v{96+r}, v{100+r}")
    for r in range(4):
        a(f"v_mov_b32 v{100+r}, v{96+r}")
    a("s_nop 1")
    for r in range(4):
        a(f"v_permlane32_swap_b32 v{96+r}, v{100+r}")
    a("s_nop 1")
    for r in range(4):
        a(f"v_add_f32 v{96+r}, v{96+r}, v{100+r}")
    a("v_cvt_pk_bf16_f32 v96, v96, v97")
    a("v_cvt_pk_bf16_f32 v97, v98, v99")
    a("v_mov_b32 v14, -2")
    a("v_min_u32 v96, v96, v14")
    a("v_min_u32 v97, v97, v14")
    a("s_add_u32 s58, s51, s52")
    a(f"buffer_store_dwordx2 v[96:97], v13, s[24:27], s58 offen{ST}")
    stamp(a, 8)
    for r in range(4):
        a(f"v_mov_b32 v{100+r}, -1")
    for i in range(4):
        a(f"buffer_store_dwordx4 v[100:103], v3, s[24:27], s57 offen offset:{i*1024}{ST}")
    a("s_add_u32 s30, s30, 1")
    a("s_add_u32 s49, s49, 0x10000")
    a("s_add_u32 s50, s50, 0x10000")
    a(f"s_branch K3_STEP{SFX}")
```

```python
NAME = "parallel_sum__memory_aug_recurrent_mem_tr__moe_arch_mod__prompt"

XN_OFF   = 0x0
R_OFF    = 0x200000
H_OFF    = 0x210000
UPD_OFF  = 0x220000
IDX_OFF  = 0x224000
MEMBUF_OFF = 0x240000
PART_OFF = 0x300000
FILL_BEG = 0x240000
FILL_END = 0x400000
WQP = 0x400000
WKP = 0x800000
WVP = 0xC00000
WOP = 0x1000000
WGP = 0x1400000
WUP = 0x1600000
WDP = 0x1800000
Q_OFF = 0x2000000
K_OFF = 0x3000000
VT_OFF = 0x4000000
KM_OFF = 0x5000000
VMT_OFF = 0x5400000
O_OFF = 0x6000000
WS_SIZE = 0x10000000

KA = dict(x=0, mem0=8, Wq=16, Wk=24, Wv=32, Wo=40, seg=48, Bx=56, wr=64, wg=72, wu=80, wd=88, out=96, dbg=104, ws=112)

class Asm:
    def __init__(self):
        self.lines = []
        self.uid = 0
    def __call__(self, s):
        for l in s.strip("\n").split("\n"):
            self.lines.append("    " + l.strip())
    def label(self, l):
        self.lines.append(l + ":")
    def newlabel(self, p="L"):
        self.uid += 1
        return f"{p}_{self.uid}"
    def comment(self, s):
        self.lines.append("    ; " + s)
    def text(self):
        return "\n".join(self.lines) + "\n"

def srd(a, s, ptr_lo, nbytes):
    a(f"s_mov_b32 s{s}, s{ptr_lo}")
    a(f"s_and_b32 s{s+1}, s{ptr_lo+1}, 0xffff")
    a(f"s_mov_b32 s{s+2}, 0x{nbytes:x}")
    a(f"s_mov_b32 s{s+3}, 0x00020000")

def kernel_header(a, name):
    a.lines.append(f".globl {name}")
    a.lines.append(".p2align 8")
    a.lines.append(f".type {name},@function")
    a.lines.append(f"{name}:")

def kernel_desc(name, vgpr, sgpr, accum, wgy=False):
    s = f""".amdhsa_kernel {name}
  .amdhsa_next_free_vgpr {vgpr}
  .amdhsa_next_free_sgpr {sgpr}
  .amdhsa_accum_offset {accum}
  .amdhsa_group_segment_fixed_size 0
  .amdhsa_kernarg_size 120
  .amdhsa_user_sgpr_count 2
  .amdhsa_user_sgpr_kernarg_segment_ptr 1
  .amdhsa_system_sgpr_workgroup_id_x 1
"""
    if wgy:
        s += "  .amdhsa_system_sgpr_workgroup_id_y 1\n"
    s += ".end_amdhsa_kernel\n"
    return s

def wave_sum(a, v, t, op="v_add_f32"):
    a("s_nop 1")
    a(f"{op}_dpp {t}, {v}, {v} quad_perm:[1,0,3,2] row_mask:0xf bank_mask:0xf")
    a("s_nop 1")
    a(f"{op}_dpp {v}, {t}, {t} quad_perm:[2,3,0,1] row_mask:0xf bank_mask:0xf")
    a("s_nop 1")
    a(f"{op}_dpp {t}, {v}, {v} row_half_mirror row_mask:0xf bank_mask:0xf")
    a("s_nop 1")
    a(f"{op}_dpp {v}, {t}, {t} row_mirror row_mask:0xf bank_mask:0xf")
    xrow_reduce(a, v, t, op)

def xrow_reduce(a, v, t, op):
    a(f"v_mov_b32 {t}, {v}")
    a("s_nop 1")
    a(f"v_permlane16_swap_b32 {v}, {t}")
    a("s_nop 1")
    a(f"{op} {v}, {v}, {t}")
    a(f"v_mov_b32 {t}, {v}")
    a("s_nop 1")
    a(f"v_permlane32_swap_b32 {v}, {t}")
    a("s_nop 1")
    a(f"{op} {v}, {v}, {t}")

PF_OFF = 0x228000
CF_OFF = 0x230000
CNT_OFF = 0x238000
ZERO_BEG = 0x228000
ZERO_END = 0x240000

class VM:
    def __init__(self, a):
        self.a = a; self.n = 0; self.tags = {}; self.done = 0
    def op(self, s, tag=None):
        self.a(s); self.n += 1
        if tag is not None: self.tags[tag] = self.n
    def need(self, tag):
        idx = self.tags[tag]
        if idx > self.done:
            cnt = self.n - idx
            assert cnt <= 63
            self.a(f"s_waitcnt vmcnt({cnt})")
            self.done = idx
    def drain(self):
        if self.done < self.n:
            self.a("s_waitcnt vmcnt(0)"); self.done = self.n
```

```python
from common import *

K1_GRID = 867
K1_LDS = 64*528

def gen_k1(a):
    kernel_header(a, "k1_kernel")
    a("s_cmp_ge_u32 s2, 867")
    a("s_cbranch_scc1 K1_END")
    a("s_load_dwordx2 s[4:5], s[0:1], 0")
    a("s_load_dwordx4 s[8:11], s[0:1], 16")
    a("s_load_dwordx4 s[12:15], s[0:1], 32")
    a("s_load_dwordx4 s[16:19], s[0:1], 64")
    a("s_load_dwordx4 s[20:23], s[0:1], 80")
    a("s_load_dwordx2 s[6:7], s[0:1], 112")
    a("s_waitcnt lgkmcnt(0)")
    srd(a, 24, 6, WS_SIZE)
    a("s_cmp_ge_u32 s2, 808")
    a("s_cbranch_scc1 K1_FILL")
    a("s_cmp_ge_u32 s2, 680")
    a("s_cbranch_scc1 K1_LN")
    a("s_cmp_ge_u32 s2, 384")
    a("s_cbranch_scc1 K1_P1")
    a("s_lshr_b32 s38, s2, 7")
    a("s_and_b32 s39, s2, 127")
    a("s_lshr_b32 s33, s39, 4")
    a("s_and_b32 s34, s39, 15")
    a("s_mov_b32 s30, 8192")
    a("s_mov_b32 s32, 16")
    a("s_mov_b32 s35, 0x400000")
    a("s_lshl_b32 s31, s38, 22")
    a(f"s_add_u32 s31, s31, 0x{WQP:x}")
    a("s_mov_b64 s[36:37], s[8:9]")
    a("s_cmp_eq_u32 s38, 0")
    a("s_cbranch_scc1 K1_PGO")
    a("s_mov_b64 s[36:37], s[10:11]")
    a("s_cmp_eq_u32 s38, 1")
    a("s_cbranch_scc1 K1_PGO")
    a("s_mov_b64 s[36:37], s[12:13]")
    a("s_branch K1_PGO")
    a.label("K1_P1")
    a("s_cmp_ge_u32 s2, 512")
    a("s_cbranch_scc1 K1_P2")
    a("s_sub_u32 s39, s2, 384")
    a("s_lshr_b32 s33, s39, 1")
    a("s_and_b32 s34, s39, 1")
    a("s_mov_b32 s30, 1024")
    a("s_mov_b32 s32, 128")
    a("s_mov_b32 s35, 0x400000")
    a(f"s_mov_b32 s31, 0x{WOP:x}")
    a("s_mov_b64 s[36:37], s[14:15]")
    a("s_branch K1_PGO")
    a.label("K1_P2")
    a("s_cmp_ge_u32 s2, 624")
    a("s_cbranch_scc1 K1_P3")
    a("s_sub_u32 s39, s2, 512")
    a(f"s_mov_b32 s31, 0x{WGP:x}")
    a("s_mov_b64 s[36:37], s[18:19]")
    a("s_cmp_lt_u32 s39, 56")
    a("s_cbranch_scc1 K1_P2b")
    a("s_sub_u32 s39, s39, 56")
    a(f"s_mov_b32 s31, 0x{WUP:x}")
    a("s_mov_b64 s[36:37], s[20:21]")
    a.label("K1_P2b")
    a("s_mul_i32 s33, s39, 37")
    a("s_lshr_b32 s33, s33, 8")
    a("s_mul_i32 s34, s33, 7")
    a("s_sub_u32 s34, s39, s34")
    a("s_mov_b32 s30, 3584")
    a("s_mov_b32 s32, 16")
    a(f"s_mov_b32 s35, 0x{512*1792*2:x}")
    a("s_branch K1_PGO")
    a.label("K1_P3")
    a("s_sub_u32 s39, s2, 624")
    a("s_lshr_b32 s33, s39, 1")
    a("s_and_b32 s34, s39, 1")
    a("s_mov_b32 s30, 1024")
    a("s_mov_b32 s32, 56")
    a(f"s_mov_b32 s35, 0x{512*1792*2:x}")
    a(f"s_mov_b32 s31, 0x{WDP:x}")
    a("s_mov_b64 s[36:37], s[22:23]")
    a.label("K1_PGO")
    a("s_mov_b32 s40, s36")
    a("s_and_b32 s41, s37, 0xffff")
    a("s_mov_b32 s42, s35")
    a("s_mov_b32 s43, 0x00020000")
    a("s_lshl_b32 s44, s33, 6")
    a("s_mul_i32 s44, s44, s30")
    a("s_lshl_b32 s45, s34, 9")
    a("s_add_u32 s44, s44, s45")
    a("s_lshl_b32 s45, s30, 3")
    a("v_lshrrev_b32 v1, 5, v0")
    a("v_and_b32 v2, 31, v0")
    a("v_lshlrev_b32 v2, 4, v2")
    a("v_mul_lo_u32 v3, v1, s30")
    a("v_add_u32 v3, v3, v2")
    a("s_movk_i32 s46, 528")
    a("v_mul_lo_u32 v4, v1, s46")
    a("v_add_u32 v4, v4, v2")
    for p in range(8):
        a(f"buffer_load_dwordx4 v[{8+4*p}:{11+4*p}], v3, s[40:43], s44 offen")
        if p < 7:
            a("s_add_u32 s44, s44, s45")
    for p in range(8):
        a(f"s_waitcnt vmcnt({7-p})")
        a(f"ds_write_b128 v4, v[{8+4*p}:{11+4*p}] offset:{p*8*528}")
    a("s_waitcnt lgkmcnt(0)")
    a("s_barrier")
    a("v_and_b32 v5, 63, v0")
    a("v_lshrrev_b32 v6, 6, v0")
    a("v_lshrrev_b32 v7, 4, v5")
    a("v_bfe_u32 v1, v5, 2, 2")
    a("v_lshl_add_u32 v1, v7, 3, v1")
    a("v_mul_lo_u32 v1, v1, s46")
    a("v_and_b32 v2, 3, v5")
    a("v_lshl_add_u32 v1, v2, 4, v1")
    a("v_lshl_add_u32 v1, v6, 7, v1")
    a("s_lshl_b32 s47, s32, 12")
    a("v_mul_lo_u32 v2, v6, s47")
    a("v_lshl_add_u32 v2, v5, 4, v2")
    a("s_lshl_b32 s48, s34, 4")
    a("s_mul_i32 s48, s48, s32")
    a("s_lshl_b32 s49, s33, 1")
    a("s_add_u32 s48, s48, s49")
    a("s_lshl_b32 s48, s48, 10")
    a("s_add_u32 s48, s48, s31")
    a("s_lshl_b32 s50, s32, 10")
    idx = 0
    for pp in range(2):
        for tt in range(2):
            for cc in range(2):
                r = 8 + 4*idx
                for half in range(2):
                    off = cc*32*528 + half*4*528 + pp*64 + tt*8
                    a(f"ds_read_b64_tr_b16 v[{r+2*half}:{r+2*half+1}], v1 offset:{off}")
                idx += 1
    idx = 0
    for pp in range(2):
        for tt in range(2):
            a(f"s_mul_i32 s49, s50, {2*pp+tt}")
            a("s_add_u32 s49, s49, s48")
            a("s_add_u32 s51, s49, 1024")
            for cc in range(2):
                r = 8 + 4*idx
                a(f"s_waitcnt lgkmcnt({2*(7-idx)})")
                a(f"buffer_store_dwordx4 v[{r}:{r+3}], v2, s[24:27], s{49 if cc==0 else 51} offen")
                idx += 1
    a("s_branch K1_END")
    a.label("K1_LN")
    srd(a, 28, 4, 2048*1024)
    srd(a, 32, 16, 1024)
    a("s_sub_u32 s36, s2, 680")
    a("s_lshl_b32 s36, s36, 4")
    a("v_and_b32 v1, 63, v0")
    a("v_lshrrev_b32 v2, 6, v0")
    a("v_lshlrev_b32 v3, 4, v1")
    a("v_lshl_add_u32 v4, v2, 12, v3")
    a("s_lshl_b32 s37, s36, 10")
    a("buffer_load_dwordx4 v[8:11], v3, s[32:35], 0 offen")
    for i in range(4):
        a(f"buffer_load_dwordx4 v[{12+4*i}:{15+4*i}], v4, s[28:31], s37 offen offset:{1024*i}")
    a("s_waitcnt vmcnt(4)")
    for j in range(4):
        a(f"v_lshlrev_b32 v{40+2*j}, 16, v{8+j}")
        a(f"v_and_b32 v{41+2*j}, 0xffff0000, v{8+j}")
    a("s_mov_b32 s38, 0x3b000000")
    a("s_mov_b32 s39, 0x3727c5ac")
    for i in range(4):
        a(f"s_waitcnt vmcnt({3-i})") if i == 0 else None
        b = 12 + 4*i
        if i > 0:
            a("s_waitcnt vmcnt(0)") if i == 1 else None
        for j in range(4):
            a(f"v_lshlrev_b32 v{48+2*j}, 16, v{b+j}")
            a(f"v_and_b32 v{49+2*j}, 0xffff0000, v{b+j}")
        a("v_add_f32 v56, v48, v49")
        for j in range(2, 8):
            a(f"v_add_f32 v56, v56, v{48+j}")
        wave_sum(a, "v56", "v57")
        a("v_mul_f32 v56, s38, v56")
        a("v_sub_f32 v58, v48, v56")
        a("v_mul_f32 v59, v58, v58")
        for j in range(1, 8):
            a(f"v_sub_f32 v58, v{48+j}, v56")
            a(f"v_fmac_f32 v59, v58, v58")
        wave_sum(a, "v59", "v57")
        a("v_mul_f32 v59, s38, v59")
        a("v_cvt_pk_bf16_f32 v58, v56, v59")
        a("v_lshlrev_b32 v56, 16, v58")
        a("v_and_b32 v59, 0xffff0000, v58")
        a("v_add_f32 v59, s39, v59")
        a("v_cvt_pk_bf16_f32 v59, v59, v59")
        a("v_lshlrev_b32 v59, 16, v59")
        a("v_sqrt_f32 v59, v59")
        a("s_nop 0")
        a("v_cvt_pk_bf16_f32 v59, v59, v59")
        a("v_lshlrev_b32 v59, 16, v59")
        a("v_rcp_f32 v58, v59")
        a("s_nop 0")
        for j in range(0, 8, 2):
            a(f"v_sub_f32 v60, v{48+j}, v56")
            a(f"v_sub_f32 v61, v{49+j}, v56")
            a("v_cvt_pk_bf16_f32 v60, v60, v61")
            a("v_and_b32 v61, 0xffff0000, v60")
            a("v_lshlrev_b32 v60, 16, v60")
            a("v_mul_f32 v62, v60, v58")
            a("v_mul_f32 v63, v61, v58")
            a("v_fma_f32 v60, -v62, v59, v60")
            a("v_fma_f32 v61, -v63, v59, v61")
            a("v_fma_f32 v62, v60, v58, v62")
            a("v_fma_f32 v63, v61, v58, v63")
            a(f"v_cvt_pk_bf16_f32 v{64+j//2}, v62, v63")
        a("v_mov_b32 v60, 0")
        for j in range(4):
            a(f"v_lshlrev_b32 v61, 16, v{64+j}")
            a(f"v_and_b32 v62, 0xffff0000, v{64+j}")
            a(f"v_fmac_f32 v60, v61, v{40+2*j}")
            a(f"v_fmac_f32 v60, v62, v{41+2*j}")
        a(f"buffer_store_dwordx4 v[64:67], v4, s[24:27], s37 offen offset:{1024*i}")
        wave_sum(a, "v60", "v57")
        a("v_cvt_pk_bf16_f32 v60, v60, v60")
        a("v_lshlrev_b32 v60, 16, v60")
        a("v_lshlrev_b32 v61, 4, v2")
        a("s_lshl_b32 s40, s36, 2")
        a(f"s_add_u32 s40, s40, 0x{R_OFF + 4*i:x}")
        a("v_cmp_eq_u32 vcc, 0, v1")
        a("s_and_saveexec_b64 s[42:43], vcc")
        a("buffer_store_dword v60, v61, s[24:27], s40 offen")
        a("s_mov_b64 exec, s[42:43]")
        a("s_nop 1")
    a("s_branch K1_END")
    a.label("K1_FILL")
    a("s_sub_u32 s36, s2, 808")
    a("s_mov_b32 s38, -1")
    a(f"s_mov_b32 s39, 0x{FILL_BEG:x}")
    a("s_cmp_lt_u32 s36, 56")
    a("s_cbranch_scc1 K1_FILL2")
    a("s_sub_u32 s36, s36, 56")
    a("s_mov_b32 s38, 0")
    a(f"s_mov_b32 s39, 0x{ZERO_BEG:x}")
    a.label("K1_FILL2")
    a("s_lshl_b32 s36, s36, 15")
    a("s_add_u32 s36, s36, s39")
    a("v_lshlrev_b32 v1, 4, v0")
    for j in range(4):
        a(f"v_mov_b32 v{4+j}, s38")
    for p in range(8):
        a(f"s_add_u32 s37, s36, {4096*p}")
        a("buffer_store_dwordx4 v[4:7], v1, s[24:27], s37 offen")
    a.label("K1_END")
    a("s_endpgm")
    return kernel_desc("k1_kernel", 72, 64, 72)
```

```python
from common import *
from proj import wq, wk, wv, tokf, v4
import proj
import workers
K3_GRID = 256
ELECT_N = 32
ELECT_SPIN = 4096
LDS_MEM = 0
LDS_SC = 8192
LDS_O = 14336
LDS_WV = 18432
K3_LDS = 18432 + 131072
SPIN_MAX = 0x40000
STAMP = False
SAMEXCD = False
ROUND_EMU = True
DBG_OFF = 0x8000000
ACCQ = [56, 60]; ACCK = [64, 68]; ACCV = [72, 76]
def wo(i, c): r = 128 + (i*4+c)*4; return f"v[{r}:{r+3}]"

def stamp(a, i):
    if not STAMP: return
    a("s_memtime s[60:61]")
    a("s_waitcnt lgkmcnt(0)")
    a("v_mov_b32 v14, s60")
    a("s_lshl_b32 s62, s30, 6")
    a("s_lshl_b32 s63, s28, 14")
    a("s_add_u32 s62, s62, s63")
    a("s_lshl_b32 s63, s29, 12")
    a("s_add_u32 s62, s62, s63")
    a(f"s_add_u32 s62, s62, 0x{DBG_OFF + 4*i:x}")
    a("v_mov_b32 v15, 0")
    a("buffer_store_dword v14, v15, s[24:27], s62 offen")

class Em:
    def __init__(self, a):
        self.a = a; self.n = 0; self.tags = {}; self.done = 0
    def reset(self):
        self.n = 0; self.tags = {}; self.done = 0
    def run(self, items):
        for it in items:
            k = it[0]
            if k == 'i': self.a(it[1])
            elif k == 'lab': self.a.label(it[1])
            elif k == 'ds':
                self.a(it[1]); self.n += 1
                if len(it) > 2: self.tags[it[2]] = self.n
            elif k == 'need':
                idx = self.tags[it[1]]
                if idx > self.done:
                    cnt = self.n - idx
                    self.a(f"s_waitcnt lgkmcnt({min(cnt, 15)})")
                    self.done = idx if cnt <= 15 else self.n - 15
            elif k == 'drain':
                self.a("s_waitcnt lgkmcnt(0)"); self.done = self.n
            else: raise ValueError(k)

def merge(main, fill, ratio):
    out = []; fi = 0; cnt = 0
    for it in main:
        if isinstance(it, list): out.extend(it)
        else: out.append(it)
        cnt += 1
        if cnt >= ratio and fi < len(fill):
            out.extend(fill[fi]); fi += 1; cnt = 0
    while fi < len(fill):
        out.extend(fill[fi]); fi += 1
    return out

def election(a):
    a("s_cmp_ge_u32 s2, 256")
    a("s_cbranch_scc1 K3_END")
    a("s_load_dwordx2 s[8:9], s[0:1], 104")
    a("s_getreg_b32 s3, hwreg(HW_REG_XCC_ID, 0, 4)")
    a("v_lshrrev_b32 v96, 6, v0")
    a("s_nop 0")
    a("v_readfirstlane_b32 s29, v96")
    a("s_waitcnt lgkmcnt(0)")
    srd(a, 12, 8, 256)
    a(f"v_mov_b32 v4, {LDS_SC}")
    a("s_cmp_lg_u32 s29, 0")
    a("s_cbranch_scc1 K3_EL_WAIT")
    a("s_mov_b64 exec, 1")
    a("s_and_b32 s3, s3, 7")
    a("s_lshl_b32 s11, s3, 2")
    a("v_mov_b32 v1, 1")
    a("v_mov_b32 v2, 0")
    a("buffer_atomic_add v1, v2, s[12:15], s11 offen sc0 sc1")
    a("s_waitcnt vmcnt(0)")
    a("v_readfirstlane_b32 s16, v1")
    a("s_mov_b32 s17, -1")
    a("s_mov_b32 s10, 0")
    a(f"s_cmp_ge_u32 s16, {ELECT_N}")
    a("s_cbranch_scc1 K3_EL_DONE")
    a("s_add_u32 s18, s3, 1")
    a(f"s_cmp_lg_u32 s16, {ELECT_N-1}")
    a("s_cbranch_scc1 K3_EL_POLL0")
    a("v_mov_b32 v6, s18")
    a("v_mov_b32 v7, 0")
    a("buffer_atomic_cmpswap v[6:7], v2, s[12:15], 0 offen offset:64 sc0 sc1")
    a("s_waitcnt vmcnt(0)")
    a.label("K3_EL_POLL0")
    a("s_mov_b32 s31, 0")
    a.label("K3_EL_POLL")
    a("buffer_load_dword v6, v2, s[12:15], 0 offen offset:64 sc0 sc1")
    a("s_waitcnt vmcnt(0)")
    a("v_readfirstlane_b32 s19, v6")
    a("s_cmp_lg_u32 s19, 0")
    a("s_cbranch_scc1 K3_EL_GOT")
    a("s_add_u32 s31, s31, 1")
    a(f"s_cmp_lt_u32 s31, {ELECT_SPIN}")
    a("s_cbranch_scc1 K3_EL_POLL")
    a("v_mov_b32 v6, 0xff")
    a("v_mov_b32 v7, 0")
    a("buffer_atomic_cmpswap v[6:7], v2, s[12:15], 0 offen offset:64 sc0 sc1")
    a("s_waitcnt vmcnt(0)")
    a("s_branch K3_EL_POLL0")
    a.label("K3_EL_GOT")
    a("s_cmp_eq_u32 s19, 0xff")
    a("s_cbranch_scc1 K3_EL_GLOBAL")
    a("s_cmp_lg_u32 s19, s18")
    a("s_cbranch_scc1 K3_EL_DONE")
    a("s_mov_b32 s17, s16")
    a("s_branch K3_EL_DONE")
    a.label("K3_EL_GLOBAL")
    a("v_mov_b32 v1, 1")
    a("buffer_atomic_add v1, v2, s[12:15], 0 offen offset:128 sc0 sc1")
    a("s_waitcnt vmcnt(0)")
    a("v_readfirstlane_b32 s16, v1")
    a("s_mov_b32 s10, 1")
    a("s_cmp_ge_u32 s16, 32")
    a("s_cbranch_scc1 K3_EL_DONE")
    a("s_mov_b32 s17, s16")
    a.label("K3_EL_DONE")
    a("v_mov_b32 v6, s17")
    a("v_mov_b32 v7, s10")
    a("ds_write_b64 v4, v[6:7]")
    a("s_waitcnt lgkmcnt(0)")
    a("s_mov_b64 exec, -1")
    a.label("K3_EL_WAIT")
    a("s_barrier")
    a("ds_read_b64 v[6:7], v4")
    a("s_waitcnt lgkmcnt(0)")
    a("v_readfirstlane_b32 s28, v6")
    a("v_readfirstlane_b32 s10, v7")
    a("s_cmp_eq_u32 s28, -1")
    a("s_cbranch_scc1 WORKER")

def gen_k3(a):
    kernel_header(a, "k23_kernel")
    election(a)
    a("s_load_dwordx2 s[6:7], s[0:1], 112")
    a("s_load_dwordx2 s[4:5], s[0:1], 8")
    a("v_lshrrev_b32 v96, 6, v0")
    a("v_and_b32 v97, 63, v0")
    a("s_nop 0")
    a("v_readfirstlane_b32 s29, v96")
    a("s_waitcnt lgkmcnt(0)")
    srd(a, 24, 6, WS_SIZE)
    srd(a, 20, 4, 8192)
    a("v_lshlrev_b32 v98, 4, v97")
    a("v_lshl_add_u32 v2, v96, 15, v98")
    a(f"v_add_u32 v2, 0x{LDS_WV:x}, v2")
    a("s_lshl_b32 s32, s28, 3")
    a("s_lshl_b32 s33, s29, 1")
    a("s_add_u32 s32, s32, s33")
    a("s_lshl_b32 s32, s32, 14")
    a(f"s_add_u32 s33, s32, 0x{WVP:x}")
    for i in range(32):
        r = 128 + 4*i
        a(f"buffer_load_dwordx4 v[{r}:{r+3}], v98, s[24:27], s33 offen offset:{(i%4)*1024}")
        if i % 4 == 3:
            a("s_add_u32 s33, s33, 4096")
    for i in range(32):
        r = 128 + 4*i
        a(f"s_waitcnt vmcnt({31-i})")
        a(f"ds_write_b128 v2, v[{r}:{r+3}] offset:{i*1024}")
    a("s_waitcnt lgkmcnt(0)")
    for (base, f) in ((WQP, wq), (WKP, wk)):
        a(f"s_add_u32 s33, s32, 0x{base:x}")
        for T in range(2):
            for c in range(16):
                i = T*16 + c
                a(f"buffer_load_dwordx4 {f(T,c)}, v98, s[24:27], s33 offen offset:{(i%4)*1024}")
                if i % 4 == 3:
                    a("s_add_u32 s33, s33, 4096")
    a("s_lshl_b32 s32, s29, 20")
    a("s_lshl_b32 s33, s28, 12")
    a("s_add_u32 s32, s32, s33")
    a(f"s_add_u32 s32, s32, 0x{WOP:x}")
    for i in range(8):
        for c in range(4):
            a(f"buffer_load_dwordx4 {wo(i,c)}, v98, s[24:27], s32 offen offset:{c*1024}")
        a("s_add_u32 s32, s32, 0x20000")
    a("v_and_b32 v100, 15, v97")
    a("v_lshrrev_b32 v101, 4, v97")
    a("v_lshrrev_b32 v102, 2, v100")
    a("v_and_b32 v103, 3, v100")
    a("v_lshl_add_u32 v102, v102, 3, v103")
    a("v_mov_b32 v104, 0x7ffffff0")
    a("v_cmp_gt_u32 s[40:41], 8, v100")
    a("v_cmp_gt_u32 s[42:43], 2, v101")
    a("v_cmp_gt_u32 s[44:45], 8, v97")
    a("v_lshl_add_u32 v0, v96, 11, v98")
    a("v_and_b32 v105, 7, v100")
    a("v_lshl_add_u32 v1, v105, 2, v101")
    a("v_lshlrev_b32 v1, 4, v1")
    a("s_movk_i32 s32, 1536")
    a("v_mul_lo_u32 v4, v96, s32")
    a("v_lshl_add_u32 v106, v101, 3, v105")
    a("v_lshl_add_u32 v4, v106, 4, v4")
    a(f"v_add_u32 v4, {LDS_SC}, v4")
    a("v_lshrrev_b32 v107, 3, v100")
    a("s_movk_i32 s32, 3072")
    a("v_mul_lo_u32 v9, v107, s32")
    a("v_lshl_add_u32 v9, v106, 4, v9")
    a(f"v_add_u32 v9, {LDS_SC}, v9")
    a("v_lshlrev_b32 v5, 8, v102")
    a("v_lshl_add_u32 v5, v96, 6, v5")
    a("v_lshl_add_u32 v5, v101, 4, v5")
    a("v_lshl_add_u32 v6, v96, 5, v102")
    a("v_lshlrev_b32 v6, 6, v6")
    a("v_lshl_add_u32 v6, v101, 4, v6")
    a("v_lshlrev_b32 v7, 13, v100")
    a("v_lshl_add_u32 v7, v96, 6, v7")
    a("v_lshl_add_u32 v7, v101, 4, v7")
    a("v_cndmask_b32 v7, v104, v7, s[40:41]")
    a("v_lshl_add_u32 v8, v96, 5, v102")
    a("v_lshlrev_b32 v8, 4, v8")
    a("v_lshl_add_u32 v8, v101, 3, v8")
    a("v_cndmask_b32 v8, v104, v8, s[42:43]")
    a("v_lshlrev_b32 v11, 8, v100")
    a("v_lshl_add_u32 v11, v101, 4, v11")
    a(f"v_add_u32 v11, {LDS_O}, v11")
    a("v_lshl_add_u32 v10, v96, 6, v11")
    a("v_lshlrev_b32 v12, 17, v96")
    a("v_lshrrev_b32 v103, 1, v100")
    a("v_lshl_add_u32 v12, v103, 12, v12")
    a("v_and_b32 v103, 1, v100")
    a("v_lshl_add_u32 v12, v103, 6, v12")
    a("v_lshl_add_u32 v12, v101, 4, v12")
    a("v_cndmask_b32 v12, v104, v12, s[40:41]")
    a("v_lshl_add_u32 v13, v96, 7, v98")
    a("v_cndmask_b32 v13, v104, v13, s[44:45]")
    a("v_bfe_u32 v103, v97, 2, 3")
    a("v_lshlrev_b32 v103, 10, v103")
    a("v_and_b32 v105, 3, v97")
    a("v_lshl_add_u32 v103, v105, 4, v103")
    a("v_lshrrev_b32 v105, 5, v97")
    a("v_lshl_add_u32 v105, v96, 2, v105")
    a("v_lshl_add_u32 v103, v105, 6, v103")
    a("buffer_load_dwordx4 v[16:19], v103, s[20:23], 0 offen")
    a("buffer_load_dwordx4 v[20:23], v103, s[20:23], 0 offen offset:128")
    a("s_mov_b32 s30, 0")
    a("s_lshl_b32 s46, s28, 8")
    a("s_lshl_b32 s48, s28, 13")
    a(f"s_add_u32 s47, s48, 0x{K_OFF:x}")
    a(f"s_add_u32 s48, s48, 0x{VT_OFF:x}")
    a(f"s_add_u32 s64, s46, 0x{PF_OFF:x}")
    a(f"s_add_u32 s65, s46, 0x{CF_OFF:x}")
    a("s_add_u32 s65, s65, s29")
    a("s_lshl_b32 s66, s29, 11")
    a("s_mov_b32 s67, 0x01010101")
    a(f"s_add_u32 s49, s46, 0x{KM_OFF:x}")
    a("s_lshl_b32 s50, s28, 11")
    a(f"s_add_u32 s50, s50, 0x{VMT_OFF:x}")
    a(f"s_mov_b32 s51, 0x{MEMBUF_OFF:x}")
    a("s_lshr_b32 s52, s28, 1")
    a("s_lshl_b32 s52, s52, 9")
    a("s_and_b32 s53, s28, 1")
    a("s_lshl_b32 s53, s53, 3")
    a("s_add_u32 s52, s52, s53")
    a("s_mov_b32 s54, 0x3db504f3")
    a("s_mov_b32 s55, 0x3fb8aa3b")
    a("s_mov_b32 s56, 0xff800000")
    a("s_mov_b64 s[36:37], exec")
    a("s_mov_b32 s31, 0")
    a.label("K3_PF0")
    a("buffer_load_dword v3, off, s[24:27], s64 sc1")
    a("s_waitcnt vmcnt(0)")
    a("v_readfirstlane_b32 s32, v3")
    a("s_add_u32 s31, s31, 1")
    a(f"s_cmp_gt_u32 s31, 0x{SPIN_MAX:x}")
    a("s_cbranch_scc1 K3_END")
    a("s_cmp_lg_u32 s32, s67")
    a("s_cbranch_scc1 K3_PF0")
    a("buffer_load_dwordx4 v[80:83], v5, s[24:27], s47 offen sc1")
    a("buffer_load_dwordx4 v[84:87], v5, s[24:27], s47 offen offset:1024 sc1")
    a("buffer_load_dwordx4 v[88:91], v6, s[24:27], s48 offen sc1")
    a("buffer_load_dwordx4 v[92:95], v6, s[24:27], s48 offen offset:256 sc1")
    a("s_add_u32 s64, s64, 4")
    a("buffer_load_dword v3, off, s[24:27], s64 sc1")
    a("s_waitcnt vmcnt(0)")
    a("ds_write_b128 v0, v[16:19]")
    a("ds_write_b128 v0, v[20:23] offset:1024")
    a("s_waitcnt lgkmcnt(0)")
    a("s_barrier")
    a("s_cmp_eq_u32 s10, 0")
    a("s_cbranch_scc1 K3_PROJ_A")
    a("s_branch K3_PROJ_B")
    gen_loop(a, "", "_A")
    gen_loop(a, " sc1", "_B")
    a.label("K3_END")
    a("s_endpgm")
    workers.gen_workers(a)
    return kernel_desc("k23_kernel", 512, 80, 256)

def gen_loop(a, ST, SFX):
    a.label(f"K3_STEP{SFX}")
    stamp(a, 0)
    a("s_mov_b32 s31, 0")
    a.label(f"K3_POLLM_L{SFX}")
    a("buffer_load_dwordx4 v[16:19], v0, s[24:27], s51 offen sc1")
    a("buffer_load_dwordx4 v[20:23], v0, s[24:27], s51 offen offset:1024 sc1")
    a("s_waitcnt vmcnt(0)")
    a("v_max3_u32 v14, v16, v17, v18")
    a("v_max3_u32 v14, v14, v19, v20")
    a("v_max3_u32 v14, v14, v21, v22")
    a("v_max_u32 v14, v14, v23")
    a("v_cmp_eq_u32 vcc, -1, v14")
    a("s_add_u32 s31, s31, 1")
    a(f"s_cmp_gt_u32 s31, 0x{SPIN_MAX:x}")
    a("s_cbranch_scc1 K3_END")
    a(f"s_cbranch_vccnz K3_POLLM_L{SFX}")
    a("ds_write_b128 v0, v[16:19]")
    a("ds_write_b128 v0, v[20:23] offset:1024")
    a("s_waitcnt lgkmcnt(0)")
    a("s_barrier")
    a.label(f"K3_PROJ{SFX}")
    stamp(a, 1)
    em = Em(a)
    I = lambda s: ('i', s)
    items = []
    def mreg(c): return 16 + 4*(c % 4)
    def treg(c, k): return 32 + 12*(c % 2) + 4*k
    for c in range(4):
        items.append(('ds', f"ds_read_b128 {v4(mreg(c))}, v1 offset:{c*512}", ('m', c)))
    for c in range(16):
        items.append(('need', ('m', c)))
        for T in range(2):
            z = "0" if c == 0 else v4(ACCQ[T])
            items.append(I(f"v_mfma_f32_16x16x32_bf16 {v4(ACCQ[T])}, {wq(T,c)}, {v4(mreg(c))}, {z}"))
        for T in range(2):
            z = "0" if c == 0 else v4(ACCK[T])
            items.append(I(f"v_mfma_f32_16x16x32_bf16 {v4(ACCK[T])}, {wk(T,c)}, {v4(mreg(c))}, {z}"))
        if c + 4 < 16:
            items.append(('ds', f"ds_read_b128 {v4(mreg(c+4))}, v1 offset:{(c+4)*512}", ('m', c+4)))
        if c in (12, 13):
            cc = c - 12
            items.append(('ds', f"ds_read_b128 {v4(treg(cc,0))}, v1 offset:{cc*512}"))
            items.append(('ds', f"ds_read_b128 {v4(treg(cc,1))}, v2 offset:{cc*1024}"))
            items.append(('ds', f"ds_read_b128 {v4(treg(cc,2))}, v2 offset:{(16+cc)*1024}", ('t', cc)))
    em.run(items)
    stamp(a, 2)
    F = []
    for c in range(16):
        g = [('need', ('t', c))]
        for T in range(2):
            z = "0" if c == 0 else v4(ACCV[T])
            g.append(I(f"v_mfma_f32_16x16x32_bf16 {v4(ACCV[T])}, {v4(treg(c,0))}, {v4(treg(c,1+T))}, {z}"))
        F.append(g)
        if c + 2 < 16:
            cc = c + 2
            F.append([('ds', f"ds_read_b128 {v4(treg(cc,0))}, v1 offset:{cc*512}"),
                      ('ds', f"ds_read_b128 {v4(treg(cc,1))}, v2 offset:{cc*1024}"),
                      ('ds', f"ds_read_b128 {v4(treg(cc,2))}, v2 offset:{(16+cc)*1024}", ('t', cc))])
    M = []
    pre = F[0] + F[1] + F[2] + F[3]
    Frest = F[4:]
    M.append(I("s_nop 1"))
    M.append(I(f"v_cvt_pk_bf16_f32 v96, v{ACCQ[0]}, v{ACCQ[0]+1}"))
    M.append(I(f"v_cvt_pk_bf16_f32 v97, v{ACCQ[0]+2}, v{ACCQ[0]+3}"))
    M.append(I(f"v_cvt_pk_bf16_f32 v98, v{ACCQ[1]}, v{ACCQ[1]+1}"))
    M.append(I(f"v_cvt_pk_bf16_f32 v99, v{ACCQ[1]+2}, v{ACCQ[1]+3}"))
    M.append(I(f"v_cvt_pk_bf16_f32 v100, v{ACCK[0]}, v{ACCK[0]+1}"))
    M.append(I(f"v_cvt_pk_bf16_f32 v101, v{ACCK[0]+2}, v{ACCK[0]+3}"))
    M.append(I(f"v_cvt_pk_bf16_f32 v102, v{ACCK[1]}, v{ACCK[1]+1}"))
    M.append(I(f"v_cvt_pk_bf16_f32 v103, v{ACCK[1]+2}, v{ACCK[1]+3}"))
    M.append(I("s_nop 1"))
    M.append(I("v_mfma_f32_16x16x32_bf16 v[104:107], v[100:103], v[96:99], 0"))
    M.append(I("v_mfma_f32_16x16x32_bf16 v[108:111], v[80:83], v[96:99], 0"))
    M.append(I("v_mfma_f32_16x16x32_bf16 v[112:115], v[84:87], v[96:99], 0"))
    M.append(I("buffer_store_dwordx4 v[100:103], v7, s[24:27], s49 offen sc1"))
    M.append(I("v_readfirstlane_b32 s32, v3"))
    M.append(I("s_add_u32 s47, s47, 0x40000"))
    M.append(I("s_cmp_eq_u32 s32, s67"))
    M.append(I(f"s_cbranch_scc0 K3_PFSLOW{SFX}"))
    M.append(('lab', f"K3_PFOK{SFX}"))
    M.append(I("buffer_load_dwordx4 v[80:83], v5, s[24:27], s47 offen sc1"))
    M.append(I("buffer_load_dwordx4 v[84:87], v5, s[24:27], s47 offen offset:1024 sc1"))
    M.append(I("s_add_u32 s64, s64, 4"))
    M.append(I("buffer_load_dword v3, off, s[24:27], s64 sc1"))
    M.append([I("s_mov_b64 exec, s[40:41]"),
              ('ds', "ds_write_b128 v4, v[104:107]"),
              ('ds', "ds_write_b128 v4, v[108:111] offset:512"),
              ('ds', "ds_write_b128 v4, v[112:115] offset:1024"),
              I("s_mov_b64 exec, s[36:37]")])
    M.append(('drain',))
    M.append(I("s_barrier"))
    for t in range(3):
        M.append(('ds', f"ds_read_b128 v[{116+4*t}:{119+4*t}], v9 offset:{t*512}"))
    for t in range(3):
        M.append(('ds', f"ds_read_b128 v[{56+4*t}:{59+4*t}], v9 offset:{1536+t*512}", ('sc', t)))
    M.append(('need', ('sc', 2)))
    for i in range(0, 12, 2):
        M.append(I(f"v_pk_add_f32 v[{104+i}:{105+i}], v[{116+i}:{117+i}], v[{56+i}:{57+i}]"))
    M.append(I("s_nop 0"))
    for i in range(12):
        M.append(I(f"v_add_f32_dpp v{116+i}, v{104+i}, v{104+i} row_ror:8 row_mask:0xf bank_mask:0xf"))
    b = 116
    if ROUND_EMU:
        for i in range(0, 12, 2):
            M.append(I(f"v_cvt_pk_bf16_f32 v{104+i//2}, v{b+i}, v{b+1+i}"))
        for i in range(0, 12, 2):
            M.append(I(f"v_lshlrev_b32 v{b+i}, 16, v{104+i//2}"))
            M.append(I(f"v_and_b32 v{b+1+i}, 0xffff0000, v{104+i//2}"))
        for i in range(12):
            M.append(I(f"v_mul_f32 v{b+i}, s54, v{b+i}"))
        for i in range(0, 12, 2):
            M.append(I(f"v_cvt_pk_bf16_f32 v{104+i//2}, v{b+i}, v{b+1+i}"))
        for i in range(0, 12, 2):
            M.append(I(f"v_lshlrev_b32 v{b+i}, 16, v{104+i//2}"))
            M.append(I(f"v_and_b32 v{b+1+i}, 0xffff0000, v{104+i//2}"))
    else:
        for i in range(12):
            M.append(I(f"v_mul_f32 v{b+i}, s54, v{b+i}"))
    M.append(I("v_mov_b32 v14, s56"))
    for i in range(4):
        M.append(I(f"v_cndmask_b32 v{b+i}, v14, v{b+i}, s[42:43]"))
    M.append(I(f"v_max3_f32 v14, v{b}, v{b+1}, v{b+2}"))
    M.append(I(f"v_max3_f32 v15, v{b+3}, v{b+4}, v{b+5}"))
    M.append(I(f"v_max3_f32 v14, v14, v{b+6}, v{b+7}"))
    M.append(I(f"v_max3_f32 v15, v15, v{b+8}, v{b+9}"))
    M.append(I(f"v_max3_f32 v14, v14, v{b+10}, v{b+11}"))
    M.append(I("v_max_f32 v14, v14, v15"))
    def xrow(v, t, op):
        M.append(I(f"v_mov_b32 {t}, {v}"))
        M.append(I("s_nop 1"))
        M.append(I(f"v_permlane16_swap_b32 {v}, {t}"))
        M.append(I("s_nop 1"))
        M.append(I(f"{op} {v}, {v}, {t}"))
        M.append(I(f"v_mov_b32 {t}, {v}"))
        M.append(I("s_nop 1"))
        M.append(I(f"v_permlane32_swap_b32 {v}, {t}"))
        M.append(I("s_nop 1"))
        M.append(I(f"{op} {v}, {v}, {t}"))
    xrow("v14", "v15", "v_max_f32")
    M.append(I("v_mul_f32 v14, s55, v14"))
    for i in range(12):
        M.append(I(f"v_fma_f32 v{b+i}, v{b+i}, s55, -v14"))
    for i in range(12):
        M.append(I(f"v_exp_f32 v{b+i}, v{b+i}"))
    M.append(I("s_nop 0"))
    M.append(I(f"v_add_f32 v14, v{b}, v{b+1}"))
    M.append(I(f"v_add_f32 v15, v{b+2}, v{b+3}"))
    for i in range(4, 12, 2):
        M.append(I(f"v_add_f32 v14, v14, v{b+i}"))
        M.append(I(f"v_add_f32 v15, v15, v{b+i+1}"))
    M.append(I("v_add_f32 v14, v14, v15"))
    xrow("v14", "v15", "v_add_f32")
    M.append(I("v_rcp_f32 v14, v14"))
    M.append(I("s_nop 0"))
    for i in range(12):
        M.append(I(f"v_mul_f32 v{b+i}, v{b+i}, v14"))
    for i in range(6):
        M.append(I(f"v_cvt_pk_bf16_f32 v{104+i}, v{b+2*i}, v{b+2*i+1}"))
    em.run(pre + merge(M, Frest, 4))
    stamp(a, 4)
    a("s_nop 7")
    a(f"v_cvt_pk_bf16_f32 v110, v{ACCV[0]}, v{ACCV[0]+1}")
    a(f"v_cvt_pk_bf16_f32 v111, v{ACCV[0]+2}, v{ACCV[0]+3}")
    a(f"v_cvt_pk_bf16_f32 v112, v{ACCV[1]}, v{ACCV[1]+1}")
    a(f"v_cvt_pk_bf16_f32 v113, v{ACCV[1]+2}, v{ACCV[1]+3}")
    a("v_mfma_f32_16x16x32_bf16 v[96:99], v[88:91], v[106:109], 0")
    a("v_mfma_f32_16x16x32_bf16 v[100:103], v[92:95], v[106:109], 0")
    a("v_mfma_f32_16x16x16_bf16 v[96:99], v[110:111], v[104:105], v[96:99]")
    a("v_mfma_f32_16x16x16_bf16 v[100:103], v[112:113], v[104:105], v[100:103]")
    a("buffer_store_dwordx2 v[110:111], v8, s[24:27], s50 offen sc1")
    a("buffer_store_dwordx2 v[112:113], v8, s[24:27], s50 offen offset:64 sc1")
    a("s_cmp_eq_u32 s30, 63")
    a(f"s_cbranch_scc1 K3_LAST{SFX}")
    a("s_add_u32 s48, s48, 0x40000")
    a("buffer_load_dwordx4 v[88:91], v6, s[24:27], s48 offen sc1")
    a("buffer_load_dwordx4 v[92:95], v6, s[24:27], s48 offen offset:256 sc1")
    a("s_nop 0")
    a("v_cvt_pk_bf16_f32 v116, v96, v97")
    a("v_cvt_pk_bf16_f32 v117, v98, v99")
    a("v_cvt_pk_bf16_f32 v118, v100, v101")
    a("v_cvt_pk_bf16_f32 v119, v102, v103")
    a("ds_write_b128 v10, v[116:119]")
    a("s_waitcnt lgkmcnt(0)")
    a("s_barrier")
    for c in range(4):
        a(f"ds_read_b128 {v4(16+4*c)}, v11 offset:{c*64}")
    for c in range(4):
        a(f"s_waitcnt lgkmcnt({3-c})")
        for i in range(8):
            acc = 32 + 4*i
            z = "0" if c == 0 else v4(acc)
            a(f"v_mfma_f32_16x16x32_bf16 {v4(acc)}, {wo(i,c)}, {v4(16+4*c)}, {z}")
    stamp(a, 5)
    a("s_and_b32 s32, s30, 1")
    a("s_lshl_b32 s32, s32, 19")
    a("s_lshl_b32 s33, s28, 7")
    a("s_add_u32 s57, s32, s33")
    a(f"s_add_u32 s57, s57, 0x{PART_OFF:x}")
    a("s_nop 0")
    for i in range(8):
        acc = 32 + 4*i
        a(f"buffer_store_dwordx4 {v4(acc)}, v12, s[24:27], s57 offen{ST}")
        if i < 7:
            a("s_add_u32 s57, s57, 16384")
    stamp(a, 6)
    a("s_add_u32 s51, s51, 8192")
    a("s_lshl_b32 s33, s28, 14")
    a("s_add_u32 s57, s32, s33")
    a(f"s_add_u32 s57, s57, 0x{PART_OFF:x}")
    a("s_add_u32 s57, s57, s66")
    a("s_mov_b32 s31, 0")
    a.label(f"K3_POLLP{SFX}")
    for i in range(4):
        a(f"buffer_load_dwordx4 v[{96+4*i}:{99+4*i}], v0, s[24:27], s57 offen offset:{i*1024} sc1")
    a("s_waitcnt vmcnt(0)")
    a("v_max3_u32 v14, v96, v97, v98")
    for i in range(99, 111, 2):
        a(f"v_max3_u32 v14, v14, v{i}, v{i+1}")
    a("v_max_u32 v14, v14, v111")
    a("v_cmp_eq_u32 vcc, -1, v14")
    a("s_add_u32 s31, s31, 1")
    a(f"s_cmp_gt_u32 s31, 0x{SPIN_MAX:x}")
    a("s_cbranch_scc1 K3_END")
    a(f"s_cbranch_vccnz K3_POLLP{SFX}")
    stamp(a, 7)
    for r in range(4):
        a(f"v_add_f32 v{96+r}, v{96+r}, v{100+r}")
        a(f"v_add_f32 v{104+r}, v{104+r}, v{108+r}")
    for r in range(4):
        a(f"v_add_f32 v{96+r}, v{96+r}, v{104+r}")
    a("s_nop 1")
    for r in range(4):
        a(f"v_add_f32_dpp v{100+r}, v{96+r}, v{96+r} row_ror:8 row_mask:0xf bank_mask:0xf")
    for r in range(4):
        a(f"v_mov_b32 v{96+r}, v{100+r}")
    a("s_nop 1")
    for r in range(4):
        a(f"v_permlane16_swap_b32 v{96+r}, v{100+r}")
    a("s_nop 1")
    for r in range(4):
        a(f"v_add_f32 v{96+r}, v{96+r}, v{100+r}")
    for r in range(4):
        a(f"v_mov_b32 v{100+r}, v{96+r}")
    a("s_nop 1")
    for r in range(4):
        a(f"v_permlane32_swap_b32 v{96+r}, v{100+r}")
    a("s_nop 1")
    for r in range(4):
        a(f"v_add_f32 v{96+r}, v{96+r}, v{100+r}")
    a("v_cvt_pk_bf16_f32 v96, v96, v97")
    a("v_cvt_pk_bf16_f32 v97, v98, v99")
    a("v_mov_b32 v14, -2")
    a("v_min_u32 v96, v96, v14")
    a("v_min_u32 v97, v97, v14")
    a("s_add_u32 s58, s51, s52")
    a(f"buffer_store_dwordx2 v[96:97], v13, s[24:27], s58 offen{ST}")
    stamp(a, 8)
    for r in range(4):
        a(f"v_mov_b32 v{100+r}, -1")
    for i in range(4):
        a(f"buffer_store_dwordx4 v[100:103], v0, s[24:27], s57 offen offset:{i*1024}{ST}")
    a("v_mov_b32 v14, 1")
    a("s_mov_b64 exec, 1")
    a("buffer_store_byte v14, off, s[24:27], s65 sc1")
    a("s_mov_b64 exec, s[36:37]")
    a("s_add_u32 s65, s65, 4")
    a("s_add_u32 s30, s30, 1")
    a("s_add_u32 s49, s49, 0x10000")
    a("s_add_u32 s50, s50, 0x10000")
    a(f"s_branch K3_STEP{SFX}")
    a.label(f"K3_LAST{SFX}")
    a("s_waitcnt vmcnt(0)")
    a("v_mov_b32 v14, 1")
    a("s_mov_b64 exec, 1")
    a("buffer_store_byte v14, off, s[24:27], s65 sc1")
    a("s_endpgm")
    a.label(f"K3_PFSLOW{SFX}")
    a("s_cmp_eq_u32 s30, 63")
    a(f"s_cbranch_scc1 K3_PFOK{SFX}")
    a("s_mov_b32 s31, 0")
    a.label(f"K3_PFS2{SFX}")
    a("buffer_load_dword v3, off, s[24:27], s64 sc1")
    a("s_waitcnt vmcnt(0)")
    a("v_readfirstlane_b32 s32, v3")
    a("s_add_u32 s31, s31, 1")
    a(f"s_cmp_gt_u32 s31, 0x{SPIN_MAX:x}")
    a("s_cbranch_scc1 K3_END")
    a("s_cmp_lg_u32 s32, s67")
    a(f"s_cbranch_scc1 K3_PFS2{SFX}")
    a(f"s_branch K3_PFOK{SFX}")
```

```python
from common import *
import proj
from proj import wq, wk, wv, tokf, v4, load_qkv_weights, proj_step
import k2
SPIN_W = 0x200000
LDS_SLOT = 0
LDS_RED = 1024
N_P1 = 224
N_F1 = 14
N_P2 = 512 - N_P1
N_F2 = 4
I_F1 = N_P1
I_P2 = I_F1 + N_F1
I_F2 = I_P2 + N_P2
I_AG = I_F2 + N_F2
I_END = I_AG + 64*32

def flag_store(a, vm, saddr):
    a("s_mov_b64 exec, 1")
    vm.op(f"buffer_store_byte v28, off, s[24:27], s{saddr} sc1")
    a("s_mov_b64 exec, -1")

def cnt_add(a, saddr):
    a("s_waitcnt vmcnt(0)")
    a("s_barrier")
    lab = a.newlabel("CA")
    a("s_cmp_lg_u32 s29, 0")
    a(f"s_cbranch_scc1 {lab}")
    a("s_mov_b64 exec, 1")
    a("v_mov_b32 v28, 1")
    a(f"buffer_atomic_add v28, off, s[24:27], s{saddr} sc1")
    a("s_mov_b64 exec, -1")
    a.label(lab)

def poll_eq(a, saddrs, vals, vt=28):
    lab = a.newlabel("PL")
    a("s_mov_b32 s31, 0")
    a.label(lab)
    for i, sa in enumerate(saddrs):
        a(f"buffer_load_dword v{vt+i}, off, s[24:27], s{sa} sc1")
    a("s_add_u32 s31, s31, 1")
    a(f"s_cmp_gt_u32 s31, 0x{SPIN_W:x}")
    a("s_cbranch_scc1 W_EXIT")
    a("s_waitcnt vmcnt(0)")
    for i, sa in enumerate(saddrs):
        a(f"v_readfirstlane_b32 s{70+i}, v{vt+i}")
    for i, sa in enumerate(saddrs):
        a(f"s_cmp_lg_u32 s{70+i}, {vals[i]}")
        a(f"s_cbranch_scc1 {lab}")

def gen_P(a):
    a.label("W_P")
    a("s_and_b32 s28, s30, 31")
    a("s_lshr_b32 s30, s30, 5")
    a("v_lshlrev_b32 v3, 4, v1")
    load_qkv_weights(a, 24, "v3", 28, 29, 32, 33)
    a("v_and_b32 v4, 15, v1")
    a("v_lshrrev_b32 v5, 4, v1")
    a("v_lshrrev_b32 v6, 2, v4")
    a("v_and_b32 v7, 3, v4")
    a("v_lshl_add_u32 v6, v6, 3, v7")
    a("v_lshlrev_b32 v8, 10, v6")
    a("v_lshl_add_u32 v8, v5, 4, v8")
    a("v_lshlrev_b32 v9, 8, v6")
    a("v_lshl_add_u32 v9, v5, 4, v9")
    a("v_lshl_add_u32 v9, v2, 6, v9")
    a("v_lshl_add_u32 v10, v2, 5, v6")
    a("v_lshlrev_b32 v10, 6, v10")
    a("v_lshl_add_u32 v10, v5, 4, v10")
    a("v_mov_b32 v28, 1")
    a("s_lshl_b32 s34, s30, 17")
    a("s_lshl_b32 s35, s30, 7")
    a("s_add_u32 s35, s35, s28")
    a("s_lshl_b32 s35, s35, 13")
    a(f"s_add_u32 s36, s35, 0x{VT_OFF:x}")
    a(f"s_add_u32 s37, s35, 0x{K_OFF:x}")
    a(f"s_add_u32 s35, s35, 0x{Q_OFF:x}")
    a("s_lshl_b32 s38, s28, 6")
    a("s_lshl_b32 s39, s30, 2")
    a("s_add_u32 s38, s38, s39")
    a("s_lshl_b32 s38, s38, 2")
    a("s_add_u32 s38, s38, s29")
    a(f"s_add_u32 s38, s38, 0x{PF_OFF:x}")
    vm = VM(a)
    vm.n = 96; vm.tags['w'] = 96
    for c in range(16):
        vm.op(f"buffer_load_dwordx4 {tokf(c)}, v8, s[24:27], s34 offen offset:{c*64}", ('t', 0, c))
    ACCQ, ACCK, ACCV = proj.ACCQ, proj.ACCK, proj.ACCV
    pend = None
    for n in range(8):
        Tt = n & 1
        last = n == 7
        if not last:
            a(f"s_add_u32 s34, s34, {4096 if Tt == 0 else 28*1024}")
        for c in range(16):
            vm.need(('t', n, c))
            proj_step(a, c)
            if not last:
                vm.op(f"buffer_load_dwordx4 {tokf(c)}, v8, s[24:27], s34 offen offset:{c*64}", ('t', n+1, c))
        if pend is not None:
            vm.need(pend)
            flag_store(a, vm, 38)
            a("s_add_u32 s38, s38, 4")
            pend = None
        a("s_nop 7")
        a(f"v_cvt_pk_bf16_f32 v12, v{ACCQ[0]}, v{ACCQ[0]+1}")
        a(f"v_cvt_pk_bf16_f32 v13, v{ACCQ[0]+2}, v{ACCQ[0]+3}")
        a(f"v_cvt_pk_bf16_f32 v14, v{ACCQ[1]}, v{ACCQ[1]+1}")
        a(f"v_cvt_pk_bf16_f32 v15, v{ACCQ[1]+2}, v{ACCQ[1]+3}")
        vm.op(f"buffer_store_dwordx4 v[12:15], v9, s[24:27], s35 offen offset:{Tt*1024} sc1")
        a(f"v_cvt_pk_bf16_f32 v16, v{ACCK[0]}, v{ACCK[0]+1}")
        a(f"v_cvt_pk_bf16_f32 v17, v{ACCK[0]+2}, v{ACCK[0]+3}")
        a(f"v_cvt_pk_bf16_f32 v18, v{ACCK[1]}, v{ACCK[1]+1}")
        a(f"v_cvt_pk_bf16_f32 v19, v{ACCK[1]+2}, v{ACCK[1]+3}")
        vm.op(f"buffer_store_dwordx4 v[16:19], v9, s[24:27], s37 offen offset:{Tt*1024} sc1")
        for T in range(2):
            a(f"v_cvt_pk_bf16_f32 v{20+4*T+2*Tt}, v{ACCV[T]}, v{ACCV[T]+1}")
            a(f"v_cvt_pk_bf16_f32 v{21+4*T+2*Tt}, v{ACCV[T]+2}, v{ACCV[T]+3}")
        if Tt == 1:
            vm.op("buffer_store_dwordx4 v[20:23], v10, s[24:27], s36 offen sc1")
            vm.op("buffer_store_dwordx4 v[24:27], v10, s[24:27], s36 offen offset:256 sc1", ('st', n))
            pend = ('st', n)
            a("s_add_u32 s35, s35, 0x40000")
            a("s_add_u32 s36, s36, 0x40000")
            a("s_add_u32 s37, s37, 0x40000")
        a("s_nop 1")
    vm.need(pend)
    flag_store(a, vm, 38)
    a("s_branch W_LOOP")

def gen_A(a):
    a.label("W_A")
    a("s_lshl_b32 s28, s32, 1")
    a("s_lshr_b32 s33, s29, 1")
    a("s_add_u32 s28, s28, s33")
    a("s_and_b32 s33, s29, 1")
    a("v_and_b32 v16, 15, v1")
    a("v_lshrrev_b32 v17, 4, v1")
    a("v_lshrrev_b32 v18, 2, v16")
    a("v_and_b32 v19, 3, v16")
    a("v_lshl_add_u32 v18, v18, 3, v19")
    a("v_mov_b32 v20, 0x7ffffff0")
    a("v_cmp_gt_u32 s[40:41], 8, v16")
    a("v_cmp_gt_u32 s[42:43], 2, v17")
    a("v_lshlrev_b32 v3, 8, v16")
    a("v_lshl_add_u32 v3, v17, 4, v3")
    a("v_lshlrev_b32 v4, 13, v16")
    a("v_lshl_add_u32 v4, v17, 4, v4")
    a("v_cndmask_b32 v4, v20, v4, s[40:41]")
    a("v_lshlrev_b32 v5, 8, v18")
    a("v_lshl_add_u32 v5, v17, 4, v5")
    a("v_lshlrev_b32 v6, 6, v18")
    a("v_lshl_add_u32 v6, v17, 4, v6")
    a("v_lshlrev_b32 v7, 4, v18")
    a("v_lshl_add_u32 v7, v17, 3, v7")
    a("v_cndmask_b32 v7, v20, v7, s[42:43]")
    a("s_lshl_b32 s34, s30, 5")
    a("s_add_u32 s34, s34, s28")
    a("s_lshl_b32 s34, s34, 13")
    a("s_lshl_b32 s35, s33, 12")
    a("s_add_u32 s35, s35, s34")
    a(f"s_add_u32 s44, s35, 0x{Q_OFF:x}")
    a(f"s_add_u32 s45, s35, 0x{O_OFF:x}")
    a(f"s_add_u32 s46, s34, 0x{K_OFF:x}")
    a(f"s_add_u32 s47, s34, 0x{VT_OFF:x}")
    a("s_lshl_b32 s35, s30, 16")
    a("s_lshl_b32 s36, s28, 8")
    a("s_add_u32 s36, s36, s35")
    a(f"s_add_u32 s36, s36, 0x{KM_OFF:x}")
    a("s_lshl_b32 s37, s28, 11")
    a("s_add_u32 s37, s37, s35")
    a(f"s_add_u32 s37, s37, 0x{VMT_OFF:x}")
    a("s_lshl_b32 s38, s28, 6")
    a("s_add_u32 s38, s38, s30")
    a("s_lshl_b32 s38, s38, 2")
    a(f"s_add_u32 s39, s38, 0x{CF_OFF:x}")
    a(f"s_add_u32 s38, s38, 0x{PF_OFF:x}")
    a("s_mov_b32 s54, 0x3db504f3")
    a("s_mov_b32 s55, 0x3fb8aa3b")
    a("s_mov_b32 s56, 0xff800000")
    a("s_mov_b32 s57, 0x01010101")
    poll_eq(a, [38, 39], ["s57", "s57"])
    for c in range(4):
        a(f"buffer_load_dwordx4 {v4(64+4*c)}, v3, s[24:27], s44 offen offset:{c*64} sc1")
    for c in range(4):
        a(f"buffer_load_dwordx4 {v4(96+4*c)}, v4, s[24:27], s36 offen offset:{c*64} sc1")
    for Tx in range(2):
        for c in range(4):
            a(f"buffer_load_dwordx4 {v4(112+(Tx*4+c)*4)}, v5, s[24:27], s46 offen offset:{Tx*1024+c*64} sc1")
    for T in range(8):
        e0 = 32*(T >> 1) + 4*(T & 1)
        a(f"s_add_u32 s48, s47, {e0*64}")
        a(f"buffer_load_dwordx4 {v4(144+4*T)}, v6, s[24:27], s48 offen sc1")
        a(f"buffer_load_dwordx2 v[{176+2*T}:{177+2*T}], v7, s[24:27], s37 offen offset:{e0*16} sc1")
    a("s_waitcnt vmcnt(16)")
    for Tk in range(3):
        acc = 192 + Tk*4
        for c in range(4):
            A = 96 + 4*c if Tk == 0 else 112 + ((Tk-1)*4+c)*4
            z = "0" if c == 0 else v4(acc)
            a(f"v_mfma_f32_16x16x32_bf16 {v4(acc)}, {v4(A)}, {v4(64+4*c)}, {z}")
    a("v_lshlrev_b32 v21, 3, v17")
    a("v_sub_u32 v21, v16, v21")
    a("s_lshl_b32 s48, s33, 4")
    a("v_add_u32 v21, s48, v21")
    a("v_mov_b32 v100, s56")
    a("s_nop 7")
    b = 192
    for i in range(0, 12, 2):
        a(f"v_cvt_pk_bf16_f32 v22, v{b+i}, v{b+1+i}")
        a(f"v_lshlrev_b32 v{b+i}, 16, v22")
        a(f"v_and_b32 v{b+1+i}, 0xffff0000, v22")
        a(f"v_mul_f32 v{b+i}, s54, v{b+i}")
        a(f"v_mul_f32 v{b+1+i}, s54, v{b+1+i}")
        a(f"v_cvt_pk_bf16_f32 v22, v{b+i}, v{b+1+i}")
        a(f"v_lshlrev_b32 v{b+i}, 16, v22")
        a(f"v_and_b32 v{b+1+i}, 0xffff0000, v22")
    for i in range(4):
        a(f"v_cndmask_b32 v{b+i}, v100, v{b+i}, s[42:43]")
    for Tx in range(2):
        for r in range(4):
            a(f"v_cmp_le_i32 vcc, {4*Tx + r}, v21")
            a("s_nop 1")
            a(f"v_cndmask_b32 v{b+4+4*Tx+r}, v100, v{b+4+4*Tx+r}, vcc")
    a(f"v_max3_f32 v22, v{b}, v{b+1}, v{b+2}")
    for i in range(3, 11, 2):
        a(f"v_max3_f32 v22, v22, v{b+i}, v{b+i+1}")
    a(f"v_max_f32 v22, v22, v{b+11}")
    xrow_reduce(a, "v22", "v23", "v_max_f32")
    a("v_mul_f32 v22, s55, v22")
    for i in range(12):
        a(f"v_fma_f32 v{b+i}, v{b+i}, s55, -v22")
    for i in range(12):
        a(f"v_exp_f32 v{b+i}, v{b+i}")
    a("s_nop 0")
    a(f"v_add_f32 v22, v{b}, v{b+1}")
    for i in range(2, 12):
        a(f"v_add_f32 v22, v22, v{b+i}")
    xrow_reduce(a, "v22", "v23", "v_add_f32")
    a("v_rcp_f32 v22, v22")
    a("s_nop 0")
    for i in range(12):
        a(f"v_mul_f32 v{b+i}, v{b+i}, v22")
    for i in range(6):
        a(f"v_cvt_pk_bf16_f32 v{216+i}, v{b+2*i}, v{b+2*i+1}")
    a("s_waitcnt vmcnt(0)")
    a("s_nop 1")
    for T in range(8):
        acc = 64 + T*4
        a(f"v_mfma_f32_16x16x32_bf16 {v4(acc)}, {v4(144+4*T)}, v[218:221], 0")
    for T in range(8):
        acc = 64 + T*4
        a(f"v_mfma_f32_16x16x16_bf16 {v4(acc)}, v[{176+2*T}:{177+2*T}], v[216:217], {v4(acc)}")
    a("s_nop 7")
    for c in range(4):
        A0 = 64 + (2*c)*4; A1 = A0 + 4
        d = 192 + c*4
        a(f"v_cvt_pk_bf16_f32 v{d}, v{A0}, v{A0+1}")
        a(f"v_cvt_pk_bf16_f32 v{d+1}, v{A0+2}, v{A0+3}")
        a(f"v_cvt_pk_bf16_f32 v{d+2}, v{A1}, v{A1+1}")
        a(f"v_cvt_pk_bf16_f32 v{d+3}, v{A1+2}, v{A1+3}")
        a(f"buffer_store_dwordx4 {v4(d)}, v3, s[24:27], s45 offen offset:{c*64} sc1")
    a("s_lshl_b32 s48, s30, 6")
    a(f"s_add_u32 s48, s48, 0x{CNT_OFF:x}")
    cnt_add(a, 48)
    a("s_branch W_LOOP")

def gen_G(a):
    a.label("W_G")
    a("v_and_b32 v16, 15, v1")
    a("v_lshrrev_b32 v17, 4, v1")
    a("v_lshlrev_b32 v3, 4, v1")
    a("s_lshl_b32 s34, s32, 8")
    a("s_lshl_b32 s35, s29, 5")
    a("s_add_u32 s34, s34, s35")
    a("s_lshl_b32 s34, s34, 10")
    a(f"s_add_u32 s34, s34, 0x{WOP:x}")
    for T in range(2):
        a(f"s_add_u32 s35, s34, {T*0x20000}")
        for cc in range(32):
            r = (T*32+cc)*4
            a(f"buffer_load_dwordx4 a[{r}:{r+3}], v3, s[24:27], s35 offen offset:{(cc%4)*1024}")
            if cc % 4 == 3:
                a("s_add_u32 s35, s35, 4096")
    a("v_lshlrev_b32 v4, 8, v16")
    a("v_lshl_add_u32 v4, v17, 4, v4")
    a("v_add_u32 v5, 4096, v4")
    a("s_lshl_b32 s36, s30, 5")
    a("s_lshl_b32 s37, s29, 3")
    a("s_add_u32 s36, s36, s37")
    a("s_lshl_b32 s36, s36, 13")
    a(f"s_add_u32 s36, s36, 0x{O_OFF:x}")
    a("s_lshl_b32 s38, s30, 6")
    a(f"s_add_u32 s38, s38, 0x{CNT_OFF:x}")
    a(f"s_mov_b32 s39, 0x{CNT_OFF+0x1040:x}")
    poll_eq(a, [38, 39], ["16", f"{N_F2}"])
    vm = VM(a)
    def breg(hd, c4, jt): return 64 + (hd % 3)*32 + (c4*2+jt)*4
    def ld(hd):
        for c4 in range(4):
            for jt in range(2):
                vm.op(f"buffer_load_dwordx4 {v4(breg(hd,c4,jt))}, v{4+jt}, s[24:27], s36 offen offset:{c4*64} sc1", (hd, c4, jt))
        a("s_add_u32 s36, s36, 8192")
    def breg(hd, c4, jt): return 64 + (hd % 6)*32 + (c4*2+jt)*4
    for hd in range(6): ld(hd)
    for hd in range(8):
        for c4 in range(4):
            cc = hd*4 + c4
            vm.need((hd, c4, 1))
            for T in range(2):
                for jt in range(2):
                    acc = 32 + (T*2+jt)*4
                    z = "0" if cc == 0 else v4(acc)
                    r = (T*32+cc)*4
                    a(f"v_mfma_f32_16x16x32_bf16 {v4(acc)}, a[{r}:{r+3}], {v4(breg(hd,c4,jt))}, {z}")
        if hd + 6 < 8:
            a("s_nop 3")
            ld(hd+6)
    a("s_nop 7")
    a("v_lshl_add_u32 v6, v2, 12, v3")
    a(f"v_add_u32 v6, {LDS_RED}, v6")
    for t in range(4):
        a(f"ds_write_b128 v6, {v4(32+4*t)} offset:{t*1024}")
    a("s_waitcnt lgkmcnt(0)")
    a("s_barrier")
    a("s_cmp_ge_u32 s29, 2")
    a("s_cbranch_scc1 W_LOOP")
    a("s_lshl_b32 s41, s30, 5")
    a("s_lshl_b32 s42, s29, 4")
    a("s_add_u32 s41, s41, s42")
    a("v_add_u32 v5, s41, v16")
    a(f"s_mov_b32 s43, 0x{IDX_OFF:x}")
    a("buffer_load_dwordx4 v[64:67], off, s[24:27], s43 sc1")
    a("buffer_load_dwordx4 v[68:71], off, s[24:27], s43 offset:16 sc1")
    a("s_lshl_b32 s42, s29, 10")
    a("v_add_u32 v6, s42, v3")
    a(f"v_add_u32 v6, {LDS_RED}, v6")
    for T in range(2):
        for w in range(4):
            a(f"ds_read_b128 {v4(96+(T*4+w)*4)}, v6 offset:{w*4096+T*2048}")
    a("v_lshlrev_b32 v8, 4, v17")
    a("v_lshl_add_u32 v9, v5, 10, v8")
    a("s_lshl_b32 s42, s32, 6")
    a("buffer_load_dwordx4 v[72:75], v9, s[16:19], s42 offen")
    a("buffer_load_dwordx4 v[76:79], v9, s[24:27], s42 offen")
    a("v_mov_b32 v10, 0x7ffffff0")
    a("s_waitcnt vmcnt(2)")
    for q in range(8):
        a(f"v_cmp_eq_u32 vcc, v{64+q}, v5")
        a(f"v_mov_b32 v7, {q*1024}")
        a("s_nop 0")
        a("v_cndmask_b32 v10, v10, v7, vcc")
    a("v_add_u32 v10, v10, v8")
    a(f"s_add_u32 s43, s42, 0x{UPD_OFF:x}")
    a("buffer_load_dwordx4 v[80:83], v10, s[24:27], s43 offen sc1")
    a("s_waitcnt lgkmcnt(0)")
    for T in range(2):
        for r in range(4):
            b = 96 + T*16 + r
            a(f"v_add_f32 v{b}, v{b}, v{b+4}")
            a(f"v_add_f32 v{b+8}, v{b+8}, v{b+12}")
        for r in range(4):
            b = 96 + T*16 + r
            a(f"v_add_f32 v{b}, v{b}, v{b+8}")
    for T in range(2):
        b = 96 + T*16
        a(f"v_cvt_pk_bf16_f32 v{84+2*T}, v{b}, v{b+1}")
        a(f"v_cvt_pk_bf16_f32 v{85+2*T}, v{b+2}, v{b+3}")
    a("s_waitcnt vmcnt(0)")
    for w in range(4):
        a(f"v_lshlrev_b32 v40, 16, v{84+w}")
        a(f"v_and_b32 v41, 0xffff0000, v{84+w}")
        a(f"v_lshlrev_b32 v42, 16, v{72+w}")
        a(f"v_and_b32 v43, 0xffff0000, v{72+w}")
        a("v_add_f32 v40, v42, v40")
        a("v_add_f32 v41, v43, v41")
        a("v_cvt_pk_bf16_f32 v44, v40, v41")
        a(f"v_lshlrev_b32 v40, 16, v{76+w}")
        a(f"v_and_b32 v41, 0xffff0000, v{76+w}")
        a(f"v_lshlrev_b32 v42, 16, v{80+w}")
        a(f"v_and_b32 v43, 0xffff0000, v{80+w}")
        a("v_add_f32 v40, v40, v42")
        a("v_add_f32 v41, v41, v43")
        a("v_cvt_pk_bf16_f32 v45, v40, v41")
        a("v_lshlrev_b32 v40, 16, v44")
        a("v_and_b32 v41, 0xffff0000, v44")
        a("v_lshlrev_b32 v42, 16, v45")
        a("v_and_b32 v43, 0xffff0000, v45")
        a("v_add_f32 v40, v40, v42")
        a("v_add_f32 v41, v41, v43")
        a(f"v_cvt_pk_bf16_f32 v{88+w}, v40, v41")
    a("buffer_store_dwordx4 v[88:91], v9, s[20:23], s42 offen")
    a("s_branch W_LOOP")

def gen_F1(a):
    a.label("W_F1")
    a("v_lshlrev_b32 v3, 4, v1")
    a("s_lshl_b32 s30, s30, 2")
    a("s_add_u32 s30, s30, s29")
    a("v_lshlrev_b32 v4, 7, v1")
    a(f"s_mov_b32 s31, 0x{R_OFF:x}")
    for i in range(8):
        a(f"buffer_load_dwordx4 {v4(64+4*i)}, v4, s[24:27], s31 offen offset:{16*i}")
    a("s_waitcnt vmcnt(0)")
    a("v_lshlrev_b32 v5, 5, v1")
    a("v_sub_u32 v5, 2047, v5")
    for i in range(32):
        r = 64 + i
        a(f"v_ashrrev_i32 v6, 31, v{r}")
        a(f"v_or_b32 v6, 0x80000000, v6")
        a(f"v_xor_b32 v{r}, v{r}, v6")
        a(f"v_and_b32 v{r}, 0xffff0000, v{r}")
        a(f"v_subrev_u32 v6, {i}, v5")
        a(f"v_or_b32 v{r}, v{r}, v6")
    a("v_mov_b32 v10, -1")
    for j in range(8):
        a("v_mov_b32 v8, 0")
        for i in range(32):
            a(f"v_cmp_lt_u32 vcc, v{64+i}, v10")
            a("s_nop 1")
            a(f"v_cndmask_b32 v6, 0, v{64+i}, vcc")
            a("v_max_u32 v8, v8, v6")
        wave_sum(a, "v8", "v9", "v_max_u32")
        a("v_mov_b32 v10, v8")
        a("s_nop 0")
        a(f"v_readfirstlane_b32 s{40+j}, v8")
    for j in range(8):
        a(f"s_and_b32 s{40+j}, s{40+j}, 0x7ff")
        a(f"s_sub_u32 s{40+j}, 2047, s{40+j}")
    a("v_and_b32 v16, 15, v1")
    a("v_lshrrev_b32 v17, 4, v1")
    a("v_and_b32 v18, 7, v16")
    a("v_mov_b32 v11, s40")
    for j in range(1, 8):
        a(f"v_cmp_eq_u32 vcc, {j}, v18")
        a(f"v_mov_b32 v12, s{40+j}")
        a("s_nop 0")
        a("v_cndmask_b32 v11, v11, v12, vcc")
    a("s_cmp_lg_u32 s30, 0")
    a("s_cbranch_scc1 W_F1A")
    a("v_lshlrev_b32 v12, 2, v11")
    a("buffer_load_dword v13, v12, s[24:27], s31 offen")
    a("v_lshlrev_b32 v12, 2, v18")
    a(f"s_mov_b32 s32, 0x{IDX_OFF:x}")
    a("buffer_store_dword v11, v12, s[24:27], s32 offen sc1")
    a("s_waitcnt vmcnt(0)")
    a("buffer_store_dword v13, v12, s[24:27], s32 offen offset:32 sc1")
    a.label("W_F1A")
    a("v_lshlrev_b32 v12, 10, v11")
    a("v_lshl_add_u32 v12, v17, 4, v12")
    for c in range(16):
        a(f"buffer_load_dwordx4 {v4(64+4*c)}, v12, s[24:27], 0 offen offset:{c*64}")
    a("s_lshl_b32 s32, s30, 15")
    a(f"s_add_u32 s33, s32, 0x{WGP:x}")
    a(f"s_add_u32 s34, s32, 0x{WUP:x}")
    for m, sb in enumerate((33, 34)):
        for i in range(32):
            r = m*128 + i*4
            a(f"buffer_load_dwordx4 a[{r}:{r+3}], v3, s[24:27], s{sb} offen offset:{(i%4)*1024}")
            if i % 4 == 3:
                a(f"s_add_u32 s{sb}, s{sb}, 4096")
    a("s_waitcnt vmcnt(0)")
    for c in range(16):
        for m in range(2):
            for T in range(2):
                acc = 40 + (m*2+T)*4
                r = m*128 + (T*16+c)*4
                z = "0" if c == 0 else v4(acc)
                a(f"v_mfma_f32_16x16x32_bf16 {v4(acc)}, a[{r}:{r+3}], {v4(64+4*c)}, {z}")
    a("s_nop 7")
    a("s_mov_b32 s35, 0xbfb8aa3b")
    for i in range(0, 8, 2):
        a(f"v_cvt_pk_bf16_f32 v4, v{40+i}, v{41+i}")
        a("v_lshlrev_b32 v5, 16, v4")
        a("v_and_b32 v6, 0xffff0000, v4")
        for g in ("v5", "v6"):
            a(f"v_mul_f32 v7, s35, {g}")
            a("v_exp_f32 v7, v7")
            a("s_nop 0")
            a("v_add_f32 v7, 1.0, v7")
            a("v_rcp_f32 v7, v7")
            a("s_nop 0")
            a(f"v_mul_f32 {g}, {g}, v7")
        a("v_cvt_pk_bf16_f32 v4, v5, v6")
        a("v_lshlrev_b32 v5, 16, v4")
        a("v_and_b32 v6, 0xffff0000, v4")
        a(f"v_cvt_pk_bf16_f32 v4, v{48+i}, v{49+i}")
        a("v_lshlrev_b32 v7, 16, v4")
        a("v_and_b32 v8, 0xffff0000, v4")
        a("v_mul_f32 v5, v5, v7")
        a("v_mul_f32 v6, v6, v8")
        a(f"v_cvt_pk_bf16_f32 v{56+i//2}, v5, v6")
    a("s_movk_i32 s35, 3584")
    a("v_mul_lo_u32 v4, v16, s35")
    a("v_lshl_add_u32 v4, v17, 4, v4")
    a("v_mov_b32 v5, 0x7ffffff0")
    a("v_cmp_gt_u32 vcc, 8, v16")
    a("s_nop 1")
    a("v_cndmask_b32 v4, v5, v4, vcc")
    a("s_lshl_b32 s36, s30, 6")
    a(f"s_add_u32 s36, s36, 0x{H_OFF:x}")
    a("buffer_store_dwordx4 v[56:59], v4, s[24:27], s36 offen sc1")
    a(f"s_mov_b32 s36, 0x{CNT_OFF+0x1000:x}")
    cnt_add(a, 36)
    a("s_branch W_LOOP")

def gen_F2(a):
    a.label("W_F2")
    a("v_and_b32 v16, 15, v1")
    a("v_lshrrev_b32 v17, 4, v1")
    a("v_mov_b32 v20, 0x7ffffff0")
    a("v_cmp_gt_u32 s[40:41], 8, v16")
    a("s_lshl_b32 s30, s30, 2")
    a("s_add_u32 s30, s30, s29")
    a("v_and_b32 v3, 7, v16")
    a("s_movk_i32 s31, 3584")
    a("v_mul_lo_u32 v3, v3, s31")
    a("v_lshl_add_u32 v3, v17, 4, v3")
    a("v_lshlrev_b32 v4, 4, v1")
    a("s_mul_i32 s32, s30, 114688")
    a(f"s_add_u32 s32, s32, 0x{WDP:x}")
    a("s_add_u32 s33, s32, 57344")
    a(f"s_mov_b32 s34, 0x{H_OFF:x}")
    a(f"s_mov_b32 s36, 0x{CNT_OFF+0x1000:x}")
    poll_eq(a, [36], [f"{N_F1}"])
    for T in range(2):
        for r in range(4):
            a(f"v_mov_b32 v{40+4*T+r}, 0")
    a("s_mov_b32 s35, 0")
    a.label("W_F2L")
    for u in range(4):
        a(f"buffer_load_dwordx4 {v4(64+12*u)}, v3, s[24:27], s34 offen offset:{u*64} sc1")
        a(f"buffer_load_dwordx4 {v4(68+12*u)}, v4, s[24:27], s32 offen offset:{u*1024}")
        a(f"buffer_load_dwordx4 {v4(72+12*u)}, v4, s[24:27], s33 offen offset:{u*1024}")
    for u in range(4):
        a(f"s_waitcnt vmcnt({9-3*u})")
        a(f"v_mfma_f32_16x16x32_bf16 v[40:43], {v4(68+12*u)}, {v4(64+12*u)}, v[40:43]")
        a(f"v_mfma_f32_16x16x32_bf16 v[44:47], {v4(72+12*u)}, {v4(64+12*u)}, v[44:47]")
    a("s_add_u32 s34, s34, 256")
    a("s_add_u32 s32, s32, 4096")
    a("s_add_u32 s33, s33, 4096")
    a("s_add_u32 s35, s35, 1")
    a("s_cmp_lt_u32 s35, 14")
    a("s_cbranch_scc1 W_F2L")
    a("v_and_b32 v5, 7, v16")
    a("v_lshlrev_b32 v5, 2, v5")
    a(f"s_mov_b32 s36, 0x{IDX_OFF+32:x}")
    a("buffer_load_dword v6, v5, s[24:27], s36 offen sc1")
    a("s_mov_b32 s55, 0xbfb8aa3b")
    a("s_waitcnt vmcnt(0)")
    a("v_mul_f32 v6, s55, v6")
    a("v_exp_f32 v6, v6")
    a("s_nop 0")
    a("v_add_f32 v6, 1.0, v6")
    a("v_rcp_f32 v6, v6")
    a("s_nop 0")
    a("v_cvt_pk_bf16_f32 v6, v6, v6")
    a("v_lshlrev_b32 v6, 16, v6")
    for i in range(0, 8, 2):
        a(f"v_cvt_pk_bf16_f32 v7, v{40+i}, v{41+i}")
        a(f"v_lshlrev_b32 v8, 16, v7")
        a(f"v_and_b32 v9, 0xffff0000, v7")
        a("v_mul_f32 v8, v8, v6")
        a("v_mul_f32 v9, v9, v6")
        a(f"v_cvt_pk_bf16_f32 v{48+i//2}, v8, v9")
    a("v_lshlrev_b32 v5, 10, v16")
    a("v_lshl_add_u32 v5, v17, 4, v5")
    a("v_cndmask_b32 v5, v20, v5, s[40:41]")
    a("s_lshl_b32 s36, s30, 6")
    a(f"s_add_u32 s36, s36, 0x{UPD_OFF:x}")
    a("buffer_store_dwordx4 v[48:51], v5, s[24:27], s36 offen sc1")
    a(f"s_mov_b32 s36, 0x{CNT_OFF+0x1040:x}")
    cnt_add(a, 36)
    a("s_branch W_LOOP")

def gen_workers(a):
    a.label("WORKER")
    a("s_load_dwordx2 s[6:7], s[0:1], 112")
    a("s_load_dwordx2 s[4:5], s[0:1], 0")
    a("s_load_dwordx2 s[8:9], s[0:1], 96")
    a("v_lshrrev_b32 v2, 6, v0")
    a("v_and_b32 v1, 63, v0")
    a(f"v_mov_b32 v30, {LDS_SLOT}")
    a("s_waitcnt lgkmcnt(0)")
    srd(a, 24, 6, WS_SIZE)
    srd(a, 16, 4, 2048*1024)
    srd(a, 20, 8, 2048*1024)
    a.label("W_LOOP")
    a("s_barrier")
    a("s_cmp_lg_u32 s29, 0")
    a("s_cbranch_scc1 W_L2")
    a("s_mov_b64 exec, 1")
    a("v_mov_b32 v28, 1")
    a("buffer_atomic_add v28, off, s[12:15], 0 offset:192 sc0 sc1")
    a("s_waitcnt vmcnt(0)")
    a("ds_write_b32 v30, v28")
    a("s_waitcnt lgkmcnt(0)")
    a("s_mov_b64 exec, -1")
    a.label("W_L2")
    a("s_barrier")
    a("ds_read_b32 v28, v30")
    a("s_waitcnt lgkmcnt(0)")
    a("v_readfirstlane_b32 s30, v28")
    a(f"s_cmp_lt_u32 s30, {I_F1}")
    a("s_cbranch_scc1 W_P")
    a(f"s_cmp_lt_u32 s30, {I_P2}")
    a("s_cbranch_scc0 W_D1")
    a(f"s_sub_u32 s30, s30, {I_F1}")
    a("s_branch W_F1")
    a.label("W_D1")
    a(f"s_cmp_lt_u32 s30, {I_F2}")
    a("s_cbranch_scc0 W_D2")
    a(f"s_sub_u32 s30, s30, {N_F1}")
    a("s_branch W_P")
    a.label("W_D2")
    a(f"s_cmp_lt_u32 s30, {I_AG}")
    a("s_cbranch_scc0 W_D3")
    a(f"s_sub_u32 s30, s30, {I_F2}")
    a("s_branch W_F2")
    a.label("W_D3")
    a(f"s_cmp_ge_u32 s30, {I_END}")
    a("s_cbranch_scc1 W_EXIT")
    a(f"s_sub_u32 s30, s30, {I_AG}")
    a("s_and_b32 s32, s30, 31")
    a("s_lshr_b32 s30, s30, 5")
    a("s_cmp_lt_u32 s32, 16")
    a("s_cbranch_scc1 W_A")
    a("s_sub_u32 s32, s32, 16")
    a("s_branch W_G")
    gen_P(a)
    gen_A(a)
    gen_G(a)
    gen_F1(a)
    gen_F2(a)
    a.label("W_EXIT")
    a("s_endpgm")
```

```python
import sys
from common import *
import k1
import k23 as k3
def main(out):
    a = Asm()
    launches = []
    descs = []
    descs.append(k1.gen_k1(a))
    launches.append(f"; @launch kernel=k1_kernel grid=({k1.K1_GRID},1,1) block=(256,1,1) lds={k1.K1_LDS}")
    descs.append(k3.gen_k3(a))
    launches.append(f"; @launch kernel=k23_kernel grid=({k3.K3_GRID},1,1) block=(256,1,1) lds={k3.K3_LDS}")
    hdr = "\n".join(launches) + "\n"
    s = hdr + '.amdgcn_target "amdgcn-amd-amdhsa--gfx950"\n.text\n' + a.text() + '.section .rodata,"a"\n'
    for d in descs:
        s += ".p2align 6\n" + d
    open(out, "w").write(s)
if __name__ == "__main__":
    if 'stamp' in sys.argv: k3.STAMP = True; k3.workers.STAMP = True
    if "realt" in sys.argv: k3.REALT = True
    if "forceglobal" in sys.argv: k3.ELECT_N = 40
    main(sys.argv[1])
```

```python
from common import *
from proj import wq, wk, wv, tokf, v4
import proj
import workers
K3_GRID = 256
ELECT_N = 32
ELECT_SPIN = 4096
LDS_MEM = 0
LDS_SC = 8192
LDS_O = 14336
LDS_WV = 18432
K3_LDS = 18432 + 131072
SPIN_MAX = 0x40000
STAMP = False
REALT = False
SAMEXCD = False
ROUND_EMU = True
DBG_OFF = 0x8000000
ACCQ = [56, 60]; ACCK = [64, 68]; ACCV = [72, 76]
def wo(i, c): r = 128 + (i*4+c)*4; return f"v[{r}:{r+3}]"

def stamp(a, i):
    if not STAMP: return
    a("s_memrealtime s[60:61]" if REALT else "s_memtime s[60:61]")
    a("s_waitcnt lgkmcnt(0)")
    a("v_mov_b32 v14, s60")
    a("s_lshl_b32 s62, s30, 6")
    a("s_lshl_b32 s63, s28, 14")
    a("s_add_u32 s62, s62, s63")
    a("s_lshl_b32 s63, s29, 12")
    a("s_add_u32 s62, s62, s63")
    a(f"s_add_u32 s62, s62, 0x{DBG_OFF + 4*i:x}")
    a("buffer_store_dword v14, off, s[24:27], s62")

def stampv(a, i, sreg):
    if not STAMP: return
    a(f"v_mov_b32 v14, s{sreg}")
    a("s_lshl_b32 s62, s30, 6")
    a("s_lshl_b32 s63, s28, 14")
    a("s_add_u32 s62, s62, s63")
    a("s_lshl_b32 s63, s29, 12")
    a("s_add_u32 s62, s62, s63")
    a(f"s_add_u32 s62, s62, 0x{DBG_OFF + 4*i:x}")
    a("buffer_store_dword v14, off, s[24:27], s62")

def stamp_items(i):
    t = Asm(); stamp(t, i)
    return [('i', l.strip()) for l in t.lines]

class Em:
    def __init__(self, a):
        self.a = a; self.n = 0; self.tags = {}; self.done = 0
    def reset(self):
        self.n = 0; self.tags = {}; self.done = 0
    def run(self, items):
        for it in items:
            k = it[0]
            if k == 'i': self.a(it[1])
            elif k == 'lab': self.a.label(it[1])
            elif k == 'ds':
                self.a(it[1]); self.n += 1
                if len(it) > 2: self.tags[it[2]] = self.n
            elif k == 'need':
                idx = self.tags[it[1]]
                if idx > self.done:
                    cnt = self.n - idx
                    self.a(f"s_waitcnt lgkmcnt({min(cnt, 15)})")
                    self.done = idx if cnt <= 15 else self.n - 15
            elif k == 'drain':
                self.a("s_waitcnt lgkmcnt(0)"); self.done = self.n
            else: raise ValueError(k)

def merge(main, fill, ratio):
    out = []; fi = 0; cnt = 0
    for it in main:
        if isinstance(it, list): out.extend(it)
        else: out.append(it)
        cnt += 1
        if cnt >= ratio and fi < len(fill):
            out.extend(fill[fi]); fi += 1; cnt = 0
    while fi < len(fill):
        out.extend(fill[fi]); fi += 1
    return out

def election(a):
    a("s_cmp_ge_u32 s2, 256")
    a("s_cbranch_scc1 K3_END")
    a("s_load_dwordx2 s[8:9], s[0:1], 104")
    a("s_getreg_b32 s3, hwreg(HW_REG_XCC_ID, 0, 4)")
    a("v_lshrrev_b32 v96, 6, v0")
    a("s_nop 0")
    a("v_readfirstlane_b32 s29, v96")
    a("s_waitcnt lgkmcnt(0)")
    srd(a, 12, 8, 256)
    a(f"v_mov_b32 v4, {LDS_SC}")
    a("s_cmp_lg_u32 s29, 0")
    a("s_cbranch_scc1 K3_EL_WAIT")
    a("s_mov_b64 exec, 1")
    a("s_and_b32 s3, s3, 7")
    a("s_lshl_b32 s11, s3, 2")
    a("v_mov_b32 v1, 1")
    a("v_mov_b32 v2, 0")
    a("buffer_atomic_add v1, v2, s[12:15], s11 offen sc0 sc1")
    a("s_waitcnt vmcnt(0)")
    a("v_readfirstlane_b32 s16, v1")
    a("s_mov_b32 s17, -1")
    a("s_mov_b32 s19, 0")
    a("s_mov_b32 s10, 0")
    a(f"s_cmp_ge_u32 s16, {ELECT_N}")
    a("s_cbranch_scc1 K3_EL_DONE")
    a("s_add_u32 s18, s3, 1")
    a(f"s_cmp_lg_u32 s16, {ELECT_N-1}")
    a("s_cbranch_scc1 K3_EL_POLL0")
    a("v_mov_b32 v6, s18")
    a("v_mov_b32 v7, 0")
    a("buffer_atomic_cmpswap v[6:7], v2, s[12:15], 0 offen offset:64 sc0 sc1")
    a("s_waitcnt vmcnt(0)")
    a.label("K3_EL_POLL0")
    a("s_mov_b32 s31, 0")
    a.label("K3_EL_POLL")
    a("buffer_load_dword v6, v2, s[12:15], 0 offen offset:64 sc0 sc1")
    a("s_waitcnt vmcnt(0)")
    a("v_readfirstlane_b32 s19, v6")
    a("s_cmp_lg_u32 s19, 0")
    a("s_cbranch_scc1 K3_EL_GOT")
    a("s_add_u32 s31, s31, 1")
    a(f"s_cmp_lt_u32 s31, {ELECT_SPIN}")
    a("s_cbranch_scc1 K3_EL_POLL")
    a("v_mov_b32 v6, 0xff")
    a("v_mov_b32 v7, 0")
    a("buffer_atomic_cmpswap v[6:7], v2, s[12:15], 0 offen offset:64 sc0 sc1")
    a("s_waitcnt vmcnt(0)")
    a("s_branch K3_EL_POLL0")
    a.label("K3_EL_GOT")
    a("s_cmp_eq_u32 s19, 0xff")
    a("s_cbranch_scc1 K3_EL_GLOBAL")
    a("s_cmp_lg_u32 s19, s18")
    a("s_cbranch_scc1 K3_EL_DONE")
    a("s_mov_b32 s17, s16")
    a("s_branch K3_EL_DONE")
    a.label("K3_EL_GLOBAL")
    a("v_mov_b32 v1, 1")
    a("buffer_atomic_add v1, v2, s[12:15], 0 offen offset:128 sc0 sc1")
    a("s_waitcnt vmcnt(0)")
    a("v_readfirstlane_b32 s16, v1")
    a("s_mov_b32 s10, 1")
    a("s_cmp_ge_u32 s16, 32")
    a("s_cbranch_scc1 K3_EL_DONE")
    a("s_mov_b32 s17, s16")
    a.label("K3_EL_DONE")
    a("v_mov_b32 v6, s17")
    a("v_mov_b32 v7, s10")
    a("v_mov_b32 v8, s19")
    a("v_mov_b32 v9, s3")
    a("ds_write_b128 v4, v[6:9]")
    a("s_waitcnt lgkmcnt(0)")
    a("s_mov_b64 exec, -1")
    a.label("K3_EL_WAIT")
    a("s_barrier")
    a("ds_read_b128 v[6:9], v4")
    a("s_waitcnt lgkmcnt(0)")
    a("v_readfirstlane_b32 s28, v6")
    a("v_readfirstlane_b32 s10, v7")
    a("v_readfirstlane_b32 s19, v8")
    a("v_readfirstlane_b32 s74, v9")
    a("s_cmp_ge_u32 s74, s19")
    a("s_cbranch_scc0 K3_RK")
    a("s_sub_u32 s74, s74, 1")
    a.label("K3_RK")
    a("s_min_u32 s74, s74, 6")
    a("s_cmp_eq_u32 s28, -1")
    a("s_cbranch_scc1 WORKER")

def gen_k3(a):
    kernel_header(a, "k23_kernel")
    election(a)
    a("s_load_dwordx2 s[6:7], s[0:1], 112")
    a("s_load_dwordx2 s[4:5], s[0:1], 8")
    a("v_lshrrev_b32 v96, 6, v0")
    a("v_and_b32 v97, 63, v0")
    a("s_nop 0")
    a("v_readfirstlane_b32 s29, v96")
    a("s_waitcnt lgkmcnt(0)")
    srd(a, 24, 6, WS_SIZE)
    srd(a, 20, 4, 8192)
    if STAMP:
        a("s_memrealtime s[60:61]")
        a("s_waitcnt lgkmcnt(0)")
        a("v_mov_b32 v14, s60")
        a("s_lshl_b32 s62, s28, 4")
        a("s_add_u32 s62, s62, 0x9100008")
        a("buffer_store_dword v14, off, s[24:27], s62")
    a("v_lshlrev_b32 v98, 4, v97")
    a("v_lshl_add_u32 v2, v96, 15, v98")
    a(f"v_add_u32 v2, 0x{LDS_WV:x}, v2")
    a("s_lshl_b32 s32, s28, 3")
    a("s_lshl_b32 s33, s29, 1")
    a("s_add_u32 s32, s32, s33")
    a("s_lshl_b32 s32, s32, 14")
    a(f"s_add_u32 s33, s32, 0x{WVP:x}")
    for i in range(32):
        r = 128 + 4*i
        a(f"buffer_load_dwordx4 v[{r}:{r+3}], v98, s[24:27], s33 offen offset:{(i%4)*1024}")
        if i % 4 == 3:
            a("s_add_u32 s33, s33, 4096")
    for i in range(32):
        r = 128 + 4*i
        a(f"s_waitcnt vmcnt({31-i})")
        a(f"ds_write_b128 v2, v[{r}:{r+3}] offset:{i*1024}")
    a("s_waitcnt lgkmcnt(0)")
    for (base, f) in ((WQP, wq), (WKP, wk)):
        a(f"s_add_u32 s33, s32, 0x{base:x}")
        for T in range(2):
            for c in range(16):
                i = T*16 + c
                a(f"buffer_load_dwordx4 {f(T,c)}, v98, s[24:27], s33 offen offset:{(i%4)*1024}")
                if i % 4 == 3:
                    a("s_add_u32 s33, s33, 4096")
    a("s_lshl_b32 s32, s29, 20")
    a("s_lshl_b32 s33, s28, 12")
    a("s_add_u32 s32, s32, s33")
    a(f"s_add_u32 s32, s32, 0x{WOP:x}")
    for i in range(8):
        for c in range(4):
            a(f"buffer_load_dwordx4 {wo(i,c)}, v98, s[24:27], s32 offen offset:{c*1024}")
        a("s_add_u32 s32, s32, 0x20000")
    a("v_and_b32 v100, 15, v97")
    a("v_lshrrev_b32 v101, 4, v97")
    a("v_lshrrev_b32 v102, 2, v100")
    a("v_and_b32 v103, 3, v100")
    a("v_lshl_add_u32 v102, v102, 3, v103")
    a("v_mov_b32 v104, 0x7ffffff0")
    a("v_cmp_gt_u32 s[40:41], 8, v100")
    a("v_cmp_gt_u32 s[42:43], 2, v101")
    a("v_cmp_gt_u32 s[44:45], 8, v97")
    a("v_lshl_add_u32 v0, v96, 11, v98")
    a("v_and_b32 v105, 7, v100")
    a("v_lshl_add_u32 v1, v105, 2, v101")
    a("v_lshlrev_b32 v1, 4, v1")
    a("s_movk_i32 s32, 1536")
    a("v_mul_lo_u32 v4, v96, s32")
    a("v_lshl_add_u32 v106, v101, 3, v105")
    a("v_lshl_add_u32 v4, v106, 4, v4")
    a(f"v_add_u32 v4, {LDS_SC}, v4")
    a("v_lshrrev_b32 v107, 3, v100")
    a("v_lshlrev_b32 v9, 9, v107")
    a("v_lshl_add_u32 v9, v106, 4, v9")
    a(f"v_add_u32 v9, {LDS_SC+512}, v9")
    a("v_lshlrev_b32 v15, 4, v106")
    a(f"v_add_u32 v15, {LDS_SC}, v15")
    a("s_and_b64 s[42:43], s[42:43], s[40:41]")
    a("v_lshlrev_b32 v5, 8, v102")
    a("v_lshl_add_u32 v5, v96, 6, v5")
    a("v_lshl_add_u32 v5, v101, 4, v5")
    a("v_lshl_add_u32 v6, v96, 5, v102")
    a("v_lshlrev_b32 v6, 6, v6")
    a("v_lshl_add_u32 v6, v101, 4, v6")
    a("v_lshlrev_b32 v7, 13, v100")
    a("v_lshl_add_u32 v7, v96, 6, v7")
    a("v_lshl_add_u32 v7, v101, 4, v7")
    a("v_cndmask_b32 v7, v104, v7, s[40:41]")
    a("v_lshl_add_u32 v8, v96, 5, v102")
    a("v_lshlrev_b32 v8, 4, v8")
    a("v_lshl_add_u32 v8, v101, 3, v8")
    a("v_cmp_gt_u32 vcc, 2, v101")
    a("s_nop 1")
    a("v_cndmask_b32 v8, v104, v8, vcc")
    a("v_lshlrev_b32 v11, 8, v100")
    a("v_lshl_add_u32 v11, v101, 4, v11")
    a(f"v_add_u32 v11, {LDS_O}, v11")
    a("v_lshl_add_u32 v10, v96, 6, v11")
    a("v_lshlrev_b32 v12, 17, v96")
    a("v_lshrrev_b32 v103, 1, v105")
    a("v_lshl_add_u32 v12, v103, 12, v12")
    a("v_and_b32 v103, 1, v100")
    a("v_lshl_add_u32 v12, v103, 6, v12")
    a("v_lshl_add_u32 v12, v101, 4, v12")
    a("v_lshl_add_u32 v12, v107, 14, v12")
    a("v_and_b32 v13, 7, v97")
    a("v_lshlrev_b32 v13, 4, v13")
    a("v_lshl_add_u32 v13, v96, 7, v13")
    a("v_lshl_add_u32 v13, v101, 2, v13")
    a("v_cndmask_b32 v13, v104, v13, s[42:43]")
    a("v_bfe_u32 v103, v97, 2, 3")
    a("v_lshlrev_b32 v103, 10, v103")
    a("v_and_b32 v105, 3, v97")
    a("v_lshl_add_u32 v103, v105, 4, v103")
    a("v_lshrrev_b32 v105, 5, v97")
    a("v_lshl_add_u32 v105, v96, 2, v105")
    a("v_lshl_add_u32 v103, v105, 6, v103")
    a("buffer_load_dwordx4 v[16:19], v103, s[20:23], 0 offen")
    a("buffer_load_dwordx4 v[20:23], v103, s[20:23], 0 offen offset:128")
    a("s_mov_b32 s30, 0")
    a("s_lshl_b32 s46, s28, 8")
    a("s_lshl_b32 s48, s28, 13")
    a(f"s_add_u32 s47, s48, 0x{K_OFF:x}")
    a(f"s_add_u32 s48, s48, 0x{VT_OFF:x}")
    a(f"s_add_u32 s64, s46, 0x{PF_OFF:x}")
    a(f"s_add_u32 s65, s46, 0x{CF_OFF:x}")
    a("s_add_u32 s65, s65, s29")
    a("s_mov_b32 s68, s65")
    a(f"s_add_u32 s65, s29, 0x{CNT_OFF+0x2000:x}")
    a("s_lshl_b32 s66, s29, 11")
    a("s_mov_b32 s67, 0x01010101")
    a(f"s_add_u32 s49, s46, 0x{KM_OFF:x}")
    a("s_lshl_b32 s50, s28, 11")
    a(f"s_add_u32 s50, s50, 0x{VMT_OFF:x}")
    a(f"s_mov_b32 s51, 0x{MEMBUF_OFF:x}")
    a("s_lshr_b32 s52, s28, 1")
    a("s_lshl_b32 s52, s52, 9")
    a("s_and_b32 s53, s28, 1")
    a("s_lshl_b32 s53, s53, 3")
    a("s_add_u32 s52, s52, s53")
    a("s_mov_b32 s54, 0x3db504f3")
    a("s_mov_b32 s55, 0x3fb8aa3b")
    a("s_mov_b32 s56, 0xff800000")
    a("s_mov_b64 s[36:37], exec")
    a("s_mov_b32 s31, 0")
    a.label("K3_PF0")
    a("buffer_load_dword v3, off, s[24:27], s64 sc1")
    a("s_waitcnt vmcnt(0)")
    a("v_readfirstlane_b32 s32, v3")
    a("s_add_u32 s31, s31, 1")
    a(f"s_cmp_gt_u32 s31, 0x{SPIN_MAX:x}")
    a("s_cbranch_scc1 K3_END")
    a("s_cmp_lg_u32 s32, s67")
    a("s_cbranch_scc1 K3_PF0")
    a("buffer_load_dwordx4 v[80:83], v5, s[24:27], s47 offen sc1")
    a("buffer_load_dwordx4 v[84:87], v5, s[24:27], s47 offen offset:1024 sc1")
    a("buffer_load_dwordx4 v[88:91], v6, s[24:27], s48 offen sc1")
    a("buffer_load_dwordx4 v[92:95], v6, s[24:27], s48 offen offset:256 sc1")
    a("s_add_u32 s64, s64, 4")
    a("buffer_load_dword v3, off, s[24:27], s64 sc1")
    a("s_waitcnt vmcnt(0)")
    a("ds_write_b128 v0, v[16:19]")
    a("ds_write_b128 v0, v[20:23] offset:1024")
    a("s_waitcnt lgkmcnt(0)")
    a("s_barrier")
    if STAMP:
        a("s_memrealtime s[60:61]")
        a("s_waitcnt lgkmcnt(0)")
        a("v_mov_b32 v14, s60")
        a("s_lshl_b32 s62, s28, 4")
        a("s_add_u32 s62, s62, 0x9100000")
        a("buffer_store_dword v14, off, s[24:27], s62")
    a("s_cmp_eq_u32 s10, 0")
    a("s_cbranch_scc1 K3_PROJ_A")
    a("s_branch K3_PROJ_B")
    gen_loop(a, STORE_A, "_A")
    gen_loop(a, " sc1", "_B")
    a.label("K3_END")
    a("s_endpgm")
    workers.gen_workers(a)
    return kernel_desc("k23_kernel", 512, 80, 256)

import os
POLL_A = os.environ.get("POLL_A", "sc1")
STORE_A = os.environ.get("STORE_A", "")
POLL_DELAY = int(os.environ.get("POLL_DELAY", "3"))
def poll_loop(a, name, sets, n, issue, done):
    S = len(sets)
    def delay():
        for _ in range(POLL_DELAY): a("s_nop 7")
    a("s_mov_b32 s31, 0")
    for k in range(S):
        issue(sets[k])
        if k < S-1: delay()
    a.label(f"{name}_L")
    for k in range(S):
        b = sets[k]
        a(f"s_waitcnt vmcnt({(S-1)*n})")
        regs = list(range(b, b+4*n))
        a(f"v_max3_u32 v14, v{regs[0]}, v{regs[1]}, v{regs[2]}")
        i = 3
        while i + 1 < len(regs):
            a(f"v_max3_u32 v14, v14, v{regs[i]}, v{regs[i+1]}"); i += 2
        if i < len(regs):
            a(f"v_max_u32 v14, v14, v{regs[i]}")
        a("v_cmp_eq_u32 vcc, -1, v14")
        a("s_add_u32 s31, s31, 1")
        a(f"s_cbranch_vccz {name}_D{k}")
        issue(b)
        if k < S-1: delay()
    a(f"s_cmp_gt_u32 s31, 0x{SPIN_MAX:x}")
    a("s_cbranch_scc1 K3_END")
    for _ in range(POLL_DELAY-1): a("s_nop 7")
    a(f"s_branch {name}_L")
    for k in range(S):
        a.label(f"{name}_D{k}")
        done(sets[k])
        if k < S-1: a(f"s_branch {name}_E")
    a.label(f"{name}_E")

def gen_loop(a, ST, SFX):
    LD = "sc1" if SFX == "_B" else POLL_A
    a.label(f"K3_STEP{SFX}")
    stamp(a, 0)
    def m_issue(b):
        a(f"buffer_load_dwordx4 v[{b}:{b+3}], v0, s[24:27], s51 offen {LD}")
        a(f"buffer_load_dwordx4 v[{b+4}:{b+7}], v0, s[24:27], s51 offen offset:1024 {LD}")
    def m_done(b):
        a(f"ds_write_b128 v0, v[{b}:{b+3}]")
        a(f"ds_write_b128 v0, v[{b+4}:{b+7}] offset:1024")
    poll_loop(a, f"K3_PM{SFX}", [96, 104, 112], 2, m_issue, m_done)
    a("buffer_store_dwordx2 v[120:121], v8, s[24:27], s50 offen sc1")
    a("buffer_store_dwordx2 v[122:123], v8, s[24:27], s50 offen offset:64 sc1")
    a("v_mov_b32 v14, 1")
    a("s_mov_b64 exec, 1")
    a("buffer_store_byte v14, off, s[24:27], s65 sc1")
    a("s_mov_b64 exec, s[36:37]")
    a("s_mov_b32 s65, s68")
    a("s_add_u32 s68, s68, 4")
    for r in range(4):
        a(f"v_mov_b32 v{124+r}, -1")
    for i in range(4):
        a(f"buffer_store_dwordx4 v[124:127], v0, s[24:27], s57 offen offset:{i*1024}{ST}")
    a("s_add_u32 s50, s50, 0x10000")
    a("s_add_u32 s48, s48, 0x40000")
    a("buffer_load_dwordx4 v[88:91], v6, s[24:27], s48 offen sc1")
    a("buffer_load_dwordx4 v[92:95], v6, s[24:27], s48 offen offset:256 sc1")
    a("s_waitcnt lgkmcnt(0)")
    a("s_barrier")
    a.label(f"K3_PROJ{SFX}")
    stamp(a, 1)
    stampv(a, 10, 31)
    em = Em(a)
    I = lambda s: ('i', s)
    items = []
    def mreg(c): return 16 + 4*(c % 4)
    def treg(c, k): return 32 + 12*(c % 2) + 4*k
    for c in range(4):
        items.append(('ds', f"ds_read_b128 {v4(mreg(c))}, v1 offset:{c*512}", ('m', c)))
    for c in range(16):
        items.append(('need', ('m', c)))
        for T in range(2):
            z = "0" if c == 0 else v4(ACCQ[T])
            items.append(I(f"v_mfma_f32_16x16x32_bf16 {v4(ACCQ[T])}, {wq(T,c)}, {v4(mreg(c))}, {z}"))
        for T in range(2):
            z = "0" if c == 0 else v4(ACCK[T])
            items.append(I(f"v_mfma_f32_16x16x32_bf16 {v4(ACCK[T])}, {wk(T,c)}, {v4(mreg(c))}, {z}"))
        if c + 4 < 16:
            items.append(('ds', f"ds_read_b128 {v4(mreg(c+4))}, v1 offset:{(c+4)*512}", ('m', c+4)))
        if c in (12, 13):
            cc = c - 12
            items.append(('ds', f"ds_read_b128 {v4(treg(cc,0))}, v1 offset:{cc*512}"))
            items.append(('ds', f"ds_read_b128 {v4(treg(cc,1))}, v2 offset:{cc*1024}"))
            items.append(('ds', f"ds_read_b128 {v4(treg(cc,2))}, v2 offset:{(16+cc)*1024}", ('t', cc)))
    em.run(items)
    stamp(a, 2)
    F = []
    for c in range(16):
        g = [('need', ('t', c))]
        for T in range(2):
            z = "0" if c == 0 else v4(ACCV[T])
            g.append(I(f"v_mfma_f32_16x16x32_bf16 {v4(ACCV[T])}, {v4(treg(c,0))}, {v4(treg(c,1+T))}, {z}"))
        F.append(g)
        if c + 2 < 16:
            cc = c + 2
            F.append([('ds', f"ds_read_b128 {v4(treg(cc,0))}, v1 offset:{cc*512}"),
                      ('ds', f"ds_read_b128 {v4(treg(cc,1))}, v2 offset:{cc*1024}"),
                      ('ds', f"ds_read_b128 {v4(treg(cc,2))}, v2 offset:{(16+cc)*1024}", ('t', cc))])
    M = []
    pre = F[0] + F[1] + F[2] + F[3]
    Frest = F[4:]
    M.append(I("s_waitcnt vmcnt(9)"))
    M.append(I(f"v_cvt_pk_bf16_f32 v96, v{ACCQ[0]}, v{ACCQ[0]+1}"))
    M.append(I(f"v_cvt_pk_bf16_f32 v97, v{ACCQ[0]+2}, v{ACCQ[0]+3}"))
    M.append(I(f"v_cvt_pk_bf16_f32 v98, v{ACCQ[1]}, v{ACCQ[1]+1}"))
    M.append(I(f"v_cvt_pk_bf16_f32 v99, v{ACCQ[1]+2}, v{ACCQ[1]+3}"))
    M.append(I(f"v_cvt_pk_bf16_f32 v100, v{ACCK[0]}, v{ACCK[0]+1}"))
    M.append(I(f"v_cvt_pk_bf16_f32 v101, v{ACCK[0]+2}, v{ACCK[0]+3}"))
    M.append(I(f"v_cvt_pk_bf16_f32 v102, v{ACCK[1]}, v{ACCK[1]+1}"))
    M.append(I(f"v_cvt_pk_bf16_f32 v103, v{ACCK[1]+2}, v{ACCK[1]+3}"))
    M.append(I("s_nop 1"))
    M.append(I("v_mfma_f32_16x16x32_bf16 v[104:107], v[100:103], v[96:99], 0"))
    M.append(I("v_mfma_f32_16x16x32_bf16 v[108:111], v[80:83], v[96:99], 0"))
    M.append(I("v_mfma_f32_16x16x32_bf16 v[112:115], v[84:87], v[96:99], 0"))
    M.append(I("buffer_store_dwordx4 v[100:103], v7, s[24:27], s49 offen sc1"))
    M.append(I("v_readfirstlane_b32 s32, v3"))
    M.append(I("s_add_u32 s47, s47, 0x40000"))
    M.append(I("s_cmp_eq_u32 s32, s67"))
    M.append(I(f"s_cbranch_scc0 K3_PFSLOW{SFX}"))
    M.append(('lab', f"K3_PFOK{SFX}"))
    M.append(I("buffer_load_dwordx4 v[80:83], v5, s[24:27], s47 offen sc1"))
    M.append(I("buffer_load_dwordx4 v[84:87], v5, s[24:27], s47 offen offset:1024 sc1"))
    M.append(I("s_add_u32 s64, s64, 4"))
    M.append(I("buffer_load_dword v3, off, s[24:27], s64 sc1"))
    M.append([I("s_mov_b64 exec, s[40:41]"),
              ('ds', "ds_write_b128 v4, v[104:107]"),
              ('ds', "ds_write_b128 v4, v[108:111] offset:512"),
              ('ds', "ds_write_b128 v4, v[112:115] offset:1024"),
              I("s_mov_b64 exec, s[36:37]")])
    M.append(('drain',))
    M.append(I("s_barrier"))
    if STAMP: M.append(stamp_items(3))
    for w in range(4):
        M.append(('ds', f"ds_read_b128 v[{96+4*w}:{99+4*w}], v9 offset:{w*1536}"))
    for w in range(4):
        M.append(('ds', f"ds_read_b128 v[{112+4*w}:{115+4*w}], v15 offset:{w*1536}", ('sc', w)))
    M.append(('need', ('sc', 3)))
    for base in (96, 112):
        for i in (0, 2):
            M.append(I(f"v_pk_add_f32 v[{base+i}:{base+1+i}], v[{base+i}:{base+1+i}], v[{base+4+i}:{base+5+i}]"))
            M.append(I(f"v_pk_add_f32 v[{base+8+i}:{base+9+i}], v[{base+8+i}:{base+9+i}], v[{base+12+i}:{base+13+i}]"))
    for i in (0, 2):
        M.append(I(f"v_pk_add_f32 v[{104+i}:{105+i}], v[{96+i}:{97+i}], v[{104+i}:{105+i}]"))
        M.append(I(f"v_pk_add_f32 v[{108+i}:{109+i}], v[{112+i}:{113+i}], v[{120+i}:{121+i}]"))
    b = 104
    for i in range(0, 8, 2):
        M.append(I(f"v_cvt_pk_bf16_f32 v{96+i//2}, v{b+i}, v{b+1+i}"))
    for i in range(0, 8, 2):
        M.append(I(f"v_lshlrev_b32 v{b+i}, 16, v{96+i//2}"))
        M.append(I(f"v_and_b32 v{b+1+i}, 0xffff0000, v{96+i//2}"))
    for i in range(8):
        M.append(I(f"v_mul_f32 v{b+i}, s54, v{b+i}"))
    for i in range(0, 8, 2):
        M.append(I(f"v_cvt_pk_bf16_f32 v{96+i//2}, v{b+i}, v{b+1+i}"))
    for i in range(0, 8, 2):
        M.append(I(f"v_lshlrev_b32 v{b+i}, 16, v{96+i//2}"))
        M.append(I(f"v_and_b32 v{b+1+i}, 0xffff0000, v{96+i//2}"))
    M.append(I("v_mov_b32 v14, s56"))
    for i in range(4, 8):
        M.append(I(f"v_cndmask_b32 v{b+i}, v14, v{b+i}, s[42:43]"))
    M.append(I(f"v_max3_f32 v14, v{b}, v{b+1}, v{b+2}"))
    M.append(I(f"v_max3_f32 v100, v{b+3}, v{b+4}, v{b+5}"))
    M.append(I(f"v_max3_f32 v14, v14, v{b+6}, v{b+7}"))
    M.append(I("v_max_f32 v14, v14, v100"))
    def xrow(v, t, op):
        M.append(I("s_nop 1"))
        M.append(I(f"{op}_dpp {v}, {v}, {v} row_ror:8 row_mask:0xf bank_mask:0xf"))
        M.append(I(f"v_mov_b32 {t}, {v}"))
        M.append(I("s_nop 1"))
        M.append(I(f"v_permlane16_swap_b32 {v}, {t}"))
        M.append(I("s_nop 1"))
        M.append(I(f"{op} {v}, {v}, {t}"))
        M.append(I(f"v_mov_b32 {t}, {v}"))
        M.append(I("s_nop 1"))
        M.append(I(f"v_permlane32_swap_b32 {v}, {t}"))
        M.append(I("s_nop 1"))
        M.append(I(f"{op} {v}, {v}, {t}"))
    xrow("v14", "v100", "v_max_f32")
    if STAMP: M.append([I("v_mov_b32 v101, v14")] + stamp_items(9) + [I("v_mov_b32 v14, v101")])
    M.append(I("v_mul_f32 v14, s55, v14"))
    for i in range(8):
        M.append(I(f"v_fma_f32 v{b+i}, v{b+i}, s55, -v14"))
    for i in range(8):
        M.append(I(f"v_exp_f32 v{b+i}, v{b+i}"))
    M.append(I("s_nop 0"))
    M.append(I(f"v_add_f32 v14, v{b}, v{b+1}"))
    M.append(I(f"v_add_f32 v100, v{b+2}, v{b+3}"))
    for i in range(4, 8, 2):
        M.append(I(f"v_add_f32 v14, v14, v{b+i}"))
        M.append(I(f"v_add_f32 v100, v100, v{b+i+1}"))
    M.append(I("v_add_f32 v14, v14, v100"))
    xrow("v14", "v100", "v_add_f32")
    M.append(I("v_rcp_f32 v14, v14"))
    M.append(I("s_nop 0"))
    for i in range(8):
        M.append(I(f"v_mul_f32 v{b+i}, v{b+i}, v14"))
    M.append(I(f"v_cvt_pk_bf16_f32 v112, v{b}, v{b+1}"))
    M.append(I(f"v_cvt_pk_bf16_f32 v113, v{b+2}, v{b+3}"))
    M.append(I(f"v_cvt_pk_bf16_f32 v116, v{b+4}, v{b+5}"))
    M.append(I(f"v_cvt_pk_bf16_f32 v117, v{b+6}, v{b+7}"))
    M.append(I("s_nop 0"))
    M.append(I("v_mov_b32_dpp v114, v112 row_ror:8 row_mask:0xf bank_mask:0xf"))
    M.append(I("v_mov_b32_dpp v115, v113 row_ror:8 row_mask:0xf bank_mask:0xf"))
    em.run(pre + merge(M, Frest, 4))
    stamp(a, 4)
    a("s_nop 7")
    a(f"v_cvt_pk_bf16_f32 v120, v{ACCV[0]}, v{ACCV[0]+1}")
    a(f"v_cvt_pk_bf16_f32 v121, v{ACCV[0]+2}, v{ACCV[0]+3}")
    a(f"v_cvt_pk_bf16_f32 v122, v{ACCV[1]}, v{ACCV[1]+1}")
    a(f"v_cvt_pk_bf16_f32 v123, v{ACCV[1]+2}, v{ACCV[1]+3}")
    a("s_cmp_eq_u32 s30, 63")
    a(f"s_cbranch_scc1 K3_LAST{SFX}")
    a("s_waitcnt vmcnt(4)")
    a("v_mfma_f32_16x16x32_bf16 v[96:99], v[88:91], v[112:115], 0")
    a("v_mfma_f32_16x16x32_bf16 v[100:103], v[92:95], v[112:115], 0")
    a("v_mfma_f32_16x16x16_bf16 v[96:99], v[120:121], v[116:117], v[96:99]")
    a("v_mfma_f32_16x16x16_bf16 v[100:103], v[122:123], v[116:117], v[100:103]")
    a("s_nop 0")
    a("s_nop 3")
    a("v_cvt_pk_bf16_f32 v104, v96, v97")
    a("v_cvt_pk_bf16_f32 v105, v98, v99")
    a("v_cvt_pk_bf16_f32 v106, v100, v101")
    a("v_cvt_pk_bf16_f32 v107, v102, v103")
    a("ds_write_b128 v10, v[104:107]")
    a("s_waitcnt lgkmcnt(0)")
    a("s_barrier")
    for c in range(4):
        a(f"ds_read_b128 {v4(16+4*c)}, v11 offset:{c*64}")
    for c in range(4):
        a(f"s_waitcnt lgkmcnt({3-c})")
        for i in range(8):
            acc = 32 + 4*i
            z = "0" if c == 0 else v4(acc)
            a(f"v_mfma_f32_16x16x32_bf16 {v4(acc)}, {wo(i,c)}, {v4(16+4*c)}, {z}")
    stamp(a, 5)
    a("s_and_b32 s32, s30, 1")
    a("s_lshl_b32 s32, s32, 19")
    a("s_lshl_b32 s33, s28, 7")
    a("s_add_u32 s57, s32, s33")
    a(f"s_add_u32 s57, s57, 0x{PART_OFF:x}")
    a("s_nop 0")
    for p in range(4):
        acc = 32 + 8*p
        for r in range(4):
            a(f"v_mov_b32_dpp v{acc+r}, v{acc+4+r} row_shr:8 row_mask:0xf bank_mask:0xc")
        a(f"buffer_store_dwordx4 {v4(acc)}, v12, s[24:27], s57 offen{ST}")
        if p < 3:
            a("s_add_u32 s57, s57, 32768")
    stamp(a, 6)
    a("s_add_u32 s51, s51, 8192")
    a("s_lshl_b32 s33, s28, 14")
    a("s_add_u32 s57, s32, s33")
    a(f"s_add_u32 s57, s57, 0x{PART_OFF:x}")
    a("s_add_u32 s57, s57, s66")
    def p_issue(b):
        for i in range(4):
            a(f"buffer_load_dwordx4 v[{b+4*i}:{b+3+4*i}], v0, s[24:27], s57 offen offset:{i*1024} {LD}")
    def p_done(b):
        for i in (0, 2):
            a(f"v_pk_add_f32 v[{96+i}:{97+i}], v[{b+i}:{b+1+i}], v[{b+4+i}:{b+5+i}]")
            a(f"v_pk_add_f32 v[{104+i}:{105+i}], v[{b+8+i}:{b+9+i}], v[{b+12+i}:{b+13+i}]")
    poll_loop(a, f"K3_PP{SFX}", [16, 56, 32], 4, p_issue, p_done)
    stamp(a, 7)
    stampv(a, 11, 31)
    for i in (0, 2):
        a(f"v_pk_add_f32 v[{96+i}:{97+i}], v[{96+i}:{97+i}], v[{104+i}:{105+i}]")
    a("s_nop 1")
    for r in range(4):
        a(f"v_add_f32_dpp v{100+r}, v{96+r}, v{96+r} row_ror:8 row_mask:0xf bank_mask:0xf")
    a("s_nop 1")
    a("v_permlane16_swap_b32 v100, v102")
    a("v_permlane16_swap_b32 v101, v103")
    a("s_nop 1")
    a("v_add_f32 v96, v100, v102")
    a("v_add_f32 v97, v101, v103")
    a("v_mov_b32 v98, v96")
    a("v_mov_b32 v99, v97")
    a("s_nop 1")
    a("v_permlane32_swap_b32 v96, v98")
    a("v_permlane32_swap_b32 v97, v99")
    a("s_nop 1")
    a("v_add_f32 v96, v96, v98")
    a("v_add_f32 v97, v97, v99")
    a("v_cvt_pk_bf16_f32 v96, v96, v97")
    a("v_mov_b32 v14, -2")
    a("v_min_u32 v96, v96, v14")
    a("s_add_u32 s58, s51, s52")
    a(f"buffer_store_dword v96, v13, s[24:27], s58 offen{ST}")
    stamp(a, 8)
    a("s_add_u32 s30, s30, 1")
    a("s_add_u32 s49, s49, 0x10000")
    a(f"s_branch K3_STEP{SFX}")
    a.label(f"K3_LAST{SFX}")
    if STAMP:
        a("s_memrealtime s[60:61]")
        a("s_waitcnt lgkmcnt(0)")
        a("v_mov_b32 v14, s60")
        a("s_lshl_b32 s62, s28, 4")
        a("s_add_u32 s62, s62, 0x9100004")
        a("buffer_store_dword v14, off, s[24:27], s62")
    a("buffer_store_dwordx2 v[120:121], v8, s[24:27], s50 offen sc1")
    a("buffer_store_dwordx2 v[122:123], v8, s[24:27], s50 offen offset:64 sc1")
    a("s_waitcnt vmcnt(0)")
    a("v_mov_b32 v14, 1")
    a("s_mov_b64 exec, 1")
    a("buffer_store_byte v14, off, s[24:27], s65 sc1")
    a("buffer_store_byte v14, off, s[24:27], s65 offset:4 sc1")
    a("s_endpgm")
    a.label(f"K3_PFSLOW{SFX}")
    a("s_cmp_eq_u32 s30, 63")
    a(f"s_cbranch_scc1 K3_PFOK{SFX}")
    a("s_mov_b32 s31, 0")
    a.label(f"K3_PFS2{SFX}")
    a("buffer_load_dword v3, off, s[24:27], s64 sc1")
    a("s_waitcnt vmcnt(0)")
    a("v_readfirstlane_b32 s32, v3")
    a("s_add_u32 s31, s31, 1")
    a(f"s_cmp_gt_u32 s31, 0x{SPIN_MAX:x}")
    a("s_cbranch_scc1 K3_END")
    a("s_cmp_lg_u32 s32, s67")
    a(f"s_cbranch_scc1 K3_PFS2{SFX}")
    a(f"s_branch K3_PFOK{SFX}")
```

```python
from common import *
import proj
from proj import wq, wk, wv, tokf, v4, load_qkv_weights, proj_step
import k2
SPIN_W = 0x200000
STAMP = False
LDS_SLOT = 0
LDS_RED = 1024
N_F1 = 14
N_F2 = 4
I_F2 = N_F1
I_AG = I_F2 + N_F2
PER_SEG = 48
I_END = I_AG + 64*PER_SEG

def flag_store(a, vm, saddr):
    a("s_mov_b64 exec, 1")
    vm.op(f"buffer_store_byte v28, off, s[24:27], s{saddr} sc1")
    a("s_mov_b64 exec, -1")

def cnt_add(a, saddr):
    a("s_waitcnt vmcnt(0)")
    a("s_barrier")
    lab = a.newlabel("CA")
    a("s_cmp_lg_u32 s29, 0")
    a(f"s_cbranch_scc1 {lab}")
    a("s_mov_b64 exec, 1")
    a("v_mov_b32 v28, 1")
    a(f"buffer_atomic_add v28, off, s[24:27], s{saddr} sc1")
    a("s_mov_b64 exec, -1")
    a.label(lab)

def poll_eq(a, saddrs, vals, vt=28):
    lab = a.newlabel("PL")
    a("s_mov_b32 s31, 0")
    a.label(lab)
    for i, sa in enumerate(saddrs):
        a(f"buffer_load_dword v{vt+i}, off, s[24:27], s{sa} sc1")
    a("s_add_u32 s31, s31, 1")
    a(f"s_cmp_gt_u32 s31, 0x{SPIN_W:x}")
    a("s_cbranch_scc1 W_EXIT")
    a("s_waitcnt vmcnt(0)")
    for i, sa in enumerate(saddrs):
        a(f"v_readfirstlane_b32 s{70+i}, v{vt+i}")
    for i, sa in enumerate(saddrs):
        a(f"s_cmp_lg_u32 s{70+i}, {vals[i]}")
        a(f"s_cbranch_scc1 {lab}")

LDS_TOK = 2048
def gen_P(a):
    a.label("W_P")
    a("s_and_b32 s28, s30, 31")
    a("s_lshr_b32 s30, s30, 5")
    a("v_lshlrev_b32 v3, 4, v1")
    a("v_and_b32 v4, 15, v1")
    a("v_lshrrev_b32 v5, 4, v1")
    a("v_lshrrev_b32 v6, 2, v4")
    a("v_and_b32 v7, 3, v4")
    a("v_lshl_add_u32 v6, v6, 3, v7")
    a("v_lshlrev_b32 v8, 10, v6")
    a("v_lshl_add_u32 v8, v5, 4, v8")
    a("s_lshl_b32 s34, s30, 17")
    a("s_lshl_b32 s35, s29, 15")
    a("s_add_u32 s34, s34, s35")
    a("s_add_u32 s35, s34, 4096")
    for Tt in range(2):
        for c in range(16):
            r = 64 + (Tt*16+c)*4
            a(f"buffer_load_dwordx4 {v4(r)}, v8, s[24:27], s{34+Tt} offen offset:{c*64}")
    a("s_lshl_b32 s32, s28, 3")
    a("s_lshl_b32 s33, s29, 1")
    a("s_add_u32 s32, s32, s33")
    a("s_lshl_b32 s32, s32, 14")
    def wload(base, f):
        a(f"s_add_u32 s33, s32, 0x{base:x}")
        for T in range(2):
            for c in range(16):
                i = T*16 + c
                a(f"buffer_load_dwordx4 {f(T,c)}, v3, s[24:27], s33 offen offset:{(i%4)*1024}")
                if i % 4 == 3:
                    a("s_add_u32 s33, s33, 4096")
    wload(WQP, wq)
    a("v_lshlrev_b32 v9, 8, v6")
    a("v_lshl_add_u32 v9, v5, 4, v9")
    a("v_lshl_add_u32 v9, v2, 6, v9")
    a("v_lshl_add_u32 v10, v2, 5, v6")
    a("v_lshlrev_b32 v10, 6, v10")
    a("v_lshl_add_u32 v10, v5, 4, v10")
    a("v_mov_b32 v28, 1")
    a("v_lshl_add_u32 v11, v2, 15, v3")
    a(f"v_add_u32 v11, {LDS_TOK}, v11")
    a(f"v_add_u32 v29, {LDS_TOK}, v3")
    a(f"v_add_u32 v31, {LDS_TOK+65536}, v3")
    a("s_lshl_b32 s35, s30, 7")
    a("s_add_u32 s35, s35, s28")
    a("s_lshl_b32 s35, s35, 13")
    a(f"s_add_u32 s36, s35, 0x{VT_OFF:x}")
    a(f"s_add_u32 s37, s35, 0x{K_OFF:x}")
    a(f"s_add_u32 s35, s35, 0x{Q_OFF:x}")
    a("s_lshl_b32 s38, s28, 6")
    a("s_lshl_b32 s39, s30, 2")
    a("s_add_u32 s38, s38, s39")
    a("s_lshl_b32 s38, s38, 2")
    a("s_add_u32 s38, s38, s29")
    a(f"s_add_u32 s38, s38, 0x{PF_OFF:x}")
    for i in range(32):
        a(f"s_waitcnt vmcnt({63-i})")
        a(f"ds_write_b128 v11, {v4(64+4*i)} offset:{i*1024}")
    wload(WKP, wk)
    a("s_waitcnt lgkmcnt(0)")
    wload(WVP, wv)
    a("s_barrier")
    import k23
    em = k23.Em(a)
    def rd(n, c):
        base = "v29" if n < 4 else "v31"
        em.run([('ds', f"ds_read_b128 {tokf(c)}, {base} offset:{(n%4)*16384 + c*1024}", ('t', n, c))])
    for c in range(16): rd(0, c)
    vm = VM(a)
    a("s_waitcnt vmcnt(0)")
    ACCQ, ACCK, ACCV = proj.ACCQ, proj.ACCK, proj.ACCV
    pend = None
    for n in range(8):
        Tt = n & 1
        last = n == 7
        for c in range(16):
            em.run([('need', ('t', n, c))])
            proj_step(a, c)
            if not last: rd(n+1, c)
        if pend is not None:
            vm.need(pend)
            flag_store(a, vm, 38)
            a("s_add_u32 s38, s38, 4")
            pend = None
        a("s_nop 7")
        a(f"v_cvt_pk_bf16_f32 v12, v{ACCQ[0]}, v{ACCQ[0]+1}")
        a(f"v_cvt_pk_bf16_f32 v13, v{ACCQ[0]+2}, v{ACCQ[0]+3}")
        a(f"v_cvt_pk_bf16_f32 v14, v{ACCQ[1]}, v{ACCQ[1]+1}")
        a(f"v_cvt_pk_bf16_f32 v15, v{ACCQ[1]+2}, v{ACCQ[1]+3}")
        vm.op(f"buffer_store_dwordx4 v[12:15], v9, s[24:27], s35 offen offset:{Tt*1024} sc1")
        a(f"v_cvt_pk_bf16_f32 v16, v{ACCK[0]}, v{ACCK[0]+1}")
        a(f"v_cvt_pk_bf16_f32 v17, v{ACCK[0]+2}, v{ACCK[0]+3}")
        a(f"v_cvt_pk_bf16_f32 v18, v{ACCK[1]}, v{ACCK[1]+1}")
        a(f"v_cvt_pk_bf16_f32 v19, v{ACCK[1]+2}, v{ACCK[1]+3}")
        vm.op(f"buffer_store_dwordx4 v[16:19], v9, s[24:27], s37 offen offset:{Tt*1024} sc1")
        for T in range(2):
            a(f"v_cvt_pk_bf16_f32 v{20+4*T+2*Tt}, v{ACCV[T]}, v{ACCV[T]+1}")
            a(f"v_cvt_pk_bf16_f32 v{21+4*T+2*Tt}, v{ACCV[T]+2}, v{ACCV[T]+3}")
        if Tt == 1:
            vm.op("buffer_store_dwordx4 v[20:23], v10, s[24:27], s36 offen sc1")
            vm.op("buffer_store_dwordx4 v[24:27], v10, s[24:27], s36 offen offset:256 sc1", ('st', n))
            pend = ('st', n)
            a("s_add_u32 s35, s35, 0x40000")
            a("s_add_u32 s36, s36, 0x40000")
            a("s_add_u32 s37, s37, 0x40000")
        a("s_nop 1")
    vm.need(pend)
    flag_store(a, vm, 38)
    a("s_branch W_LOOP")

def gen_A(a):
    a.label("W_A")
    a("s_lshl_b32 s28, s32, 1")
    a("s_lshr_b32 s33, s29, 1")
    a("s_add_u32 s28, s28, s33")
    a("s_and_b32 s33, s29, 1")
    a("v_and_b32 v16, 15, v1")
    a("v_lshrrev_b32 v17, 4, v1")
    a("v_lshrrev_b32 v18, 2, v16")
    a("v_and_b32 v19, 3, v16")
    a("v_lshl_add_u32 v18, v18, 3, v19")
    a("v_mov_b32 v20, 0x7ffffff0")
    a("v_cmp_gt_u32 s[40:41], 8, v16")
    a("v_cmp_gt_u32 s[42:43], 2, v17")
    a("v_lshlrev_b32 v3, 8, v16")
    a("v_lshl_add_u32 v3, v17, 4, v3")
    a("v_lshlrev_b32 v4, 13, v16")
    a("v_lshl_add_u32 v4, v17, 4, v4")
    a("v_cndmask_b32 v4, v20, v4, s[40:41]")
    a("v_lshlrev_b32 v5, 8, v18")
    a("v_lshl_add_u32 v5, v17, 4, v5")
    a("v_lshlrev_b32 v6, 6, v18")
    a("v_lshl_add_u32 v6, v17, 4, v6")
    a("v_lshlrev_b32 v7, 4, v18")
    a("v_lshl_add_u32 v7, v17, 3, v7")
    a("v_cndmask_b32 v7, v20, v7, s[42:43]")
    a("s_lshl_b32 s34, s30, 5")
    a("s_add_u32 s34, s34, s28")
    a("s_lshl_b32 s34, s34, 13")
    a("s_lshl_b32 s35, s33, 12")
    a("s_add_u32 s35, s35, s34")
    a(f"s_add_u32 s44, s35, 0x{Q_OFF:x}")
    a(f"s_add_u32 s45, s35, 0x{O_OFF:x}")
    a(f"s_add_u32 s46, s34, 0x{K_OFF:x}")
    a(f"s_add_u32 s47, s34, 0x{VT_OFF:x}")
    a("s_lshl_b32 s35, s30, 16")
    a("s_lshl_b32 s36, s28, 8")
    a("s_add_u32 s36, s36, s35")
    a(f"s_add_u32 s36, s36, 0x{KM_OFF:x}")
    a("s_lshl_b32 s37, s28, 11")
    a("s_add_u32 s37, s37, s35")
    a(f"s_add_u32 s37, s37, 0x{VMT_OFF:x}")
    a("s_lshl_b32 s38, s28, 6")
    a("s_add_u32 s38, s38, s30")
    a("s_lshl_b32 s38, s38, 2")
    a(f"s_add_u32 s39, s38, 0x{CF_OFF:x}")
    a(f"s_add_u32 s38, s38, 0x{PF_OFF:x}")
    a("s_mov_b32 s54, 0x3db504f3")
    a("s_mov_b32 s55, 0x3fb8aa3b")
    a("s_mov_b32 s56, 0xff800000")
    a("s_mov_b32 s57, 0x01010101")
    poll_eq(a, [38], ["s57"])
    for c in range(4):
        a(f"buffer_load_dwordx4 {v4(64+4*c)}, v3, s[24:27], s44 offen offset:{c*64} sc1")
    for Tx in range(2):
        for c in range(4):
            a(f"buffer_load_dwordx4 {v4(112+(Tx*4+c)*4)}, v5, s[24:27], s46 offen offset:{Tx*1024+c*64} sc1")
    for T in range(8):
        e0 = 32*(T >> 1) + 4*(T & 1)
        a(f"s_add_u32 s48, s47, {e0*64}")
        a(f"buffer_load_dwordx4 {v4(144+4*T)}, v6, s[24:27], s48 offen sc1")
    a("s_waitcnt vmcnt(8)")
    for Tk in range(1, 3):
        acc = 192 + Tk*4
        for c in range(4):
            A = 112 + ((Tk-1)*4+c)*4
            z = "0" if c == 0 else v4(acc)
            a(f"v_mfma_f32_16x16x32_bf16 {v4(acc)}, {v4(A)}, {v4(64+4*c)}, {z}")
    poll_eq(a, [39], ["s57"])
    for c in range(4):
        a(f"buffer_load_dwordx4 {v4(96+4*c)}, v4, s[24:27], s36 offen offset:{c*64} sc1")
    for T in range(8):
        e0 = 32*(T >> 1) + 4*(T & 1)
        a(f"buffer_load_dwordx2 v[{176+2*T}:{177+2*T}], v7, s[24:27], s37 offen offset:{e0*16} sc1")
    a("s_waitcnt vmcnt(8)")
    for c in range(4):
        z = "0" if c == 0 else v4(192)
        a(f"v_mfma_f32_16x16x32_bf16 {v4(192)}, {v4(96+4*c)}, {v4(64+4*c)}, {z}")
    a("v_lshlrev_b32 v21, 3, v17")
    a("v_sub_u32 v21, v16, v21")
    a("s_lshl_b32 s48, s33, 4")
    a("v_add_u32 v21, s48, v21")
    a("v_mov_b32 v100, s56")
    a("s_nop 7")
    b = 192
    for i in range(0, 12, 2):
        a(f"v_cvt_pk_bf16_f32 v22, v{b+i}, v{b+1+i}")
        a(f"v_lshlrev_b32 v{b+i}, 16, v22")
        a(f"v_and_b32 v{b+1+i}, 0xffff0000, v22")
        a(f"v_mul_f32 v{b+i}, s54, v{b+i}")
        a(f"v_mul_f32 v{b+1+i}, s54, v{b+1+i}")
        a(f"v_cvt_pk_bf16_f32 v22, v{b+i}, v{b+1+i}")
        a(f"v_lshlrev_b32 v{b+i}, 16, v22")
        a(f"v_and_b32 v{b+1+i}, 0xffff0000, v22")
    for i in range(4):
        a(f"v_cndmask_b32 v{b+i}, v100, v{b+i}, s[42:43]")
    for Tx in range(2):
        for r in range(4):
            a(f"v_cmp_le_i32 vcc, {4*Tx + r}, v21")
            a("s_nop 1")
            a(f"v_cndmask_b32 v{b+4+4*Tx+r}, v100, v{b+4+4*Tx+r}, vcc")
    a(f"v_max3_f32 v22, v{b}, v{b+1}, v{b+2}")
    for i in range(3, 11, 2):
        a(f"v_max3_f32 v22, v22, v{b+i}, v{b+i+1}")
    a(f"v_max_f32 v22, v22, v{b+11}")
    xrow_reduce(a, "v22", "v23", "v_max_f32")
    a("v_mul_f32 v22, s55, v22")
    for i in range(12):
        a(f"v_fma_f32 v{b+i}, v{b+i}, s55, -v22")
    for i in range(12):
        a(f"v_exp_f32 v{b+i}, v{b+i}")
    a("s_nop 0")
    a(f"v_add_f32 v22, v{b}, v{b+1}")
    for i in range(2, 12):
        a(f"v_add_f32 v22, v22, v{b+i}")
    xrow_reduce(a, "v22", "v23", "v_add_f32")
    a("v_rcp_f32 v22, v22")
    a("s_nop 0")
    for i in range(12):
        a(f"v_mul_f32 v{b+i}, v{b+i}, v22")
    for i in range(6):
        a(f"v_cvt_pk_bf16_f32 v{216+i}, v{b+2*i}, v{b+2*i+1}")
    a("s_waitcnt vmcnt(0)")
    a("s_nop 1")
    for T in range(8):
        acc = 64 + T*4
        a(f"v_mfma_f32_16x16x32_bf16 {v4(acc)}, {v4(144+4*T)}, v[218:221], 0")
    for T in range(8):
        acc = 64 + T*4
        a(f"v_mfma_f32_16x16x16_bf16 {v4(acc)}, v[{176+2*T}:{177+2*T}], v[216:217], {v4(acc)}")
    a("s_nop 7")
    for c in range(4):
        A0 = 64 + (2*c)*4; A1 = A0 + 4
        d = 192 + c*4
        a(f"v_cvt_pk_bf16_f32 v{d}, v{A0}, v{A0+1}")
        a(f"v_cvt_pk_bf16_f32 v{d+1}, v{A0+2}, v{A0+3}")
        a(f"v_cvt_pk_bf16_f32 v{d+2}, v{A1}, v{A1+1}")
        a(f"v_cvt_pk_bf16_f32 v{d+3}, v{A1+2}, v{A1+3}")
        a(f"buffer_store_dwordx4 {v4(d)}, v3, s[24:27], s45 offen offset:{c*64} sc1")
    a("s_lshl_b32 s48, s30, 6")
    a(f"s_add_u32 s48, s48, 0x{CNT_OFF:x}")
    cnt_add(a, 48)
    a("s_branch W_LOOP")

def gen_G(a):
    a.label("W_G")
    a("s_and_b32 s33, s32, 1")
    a("s_lshr_b32 s32, s32, 1")
    a("v_and_b32 v16, 15, v1")
    a("v_lshrrev_b32 v17, 4, v1")
    a("v_lshlrev_b32 v3, 4, v1")
    a(f"s_mov_b32 s39, 0x{CNT_OFF+0x1040:x}")
    poll_eq(a, [39], [f"{N_F2}"])
    a("s_lshl_b32 s41, s30, 5")
    a("s_lshl_b32 s42, s33, 4")
    a("s_add_u32 s41, s41, s42")
    a("v_add_u32 v5, s41, v16")
    a(f"s_mov_b32 s43, 0x{IDX_OFF:x}")
    a("buffer_load_dwordx4 v[64:67], off, s[24:27], s43 sc1")
    a("buffer_load_dwordx4 v[68:71], off, s[24:27], s43 offset:16 sc1")
    a("v_lshlrev_b32 v8, 4, v17")
    a("v_lshl_add_u32 v9, v5, 10, v8")
    a("s_lshl_b32 s42, s32, 6")
    a("buffer_load_dwordx4 v[48:51], v9, s[16:19], s42 offen")
    a("buffer_load_dwordx4 v[52:55], v9, s[24:27], s42 offen")
    a("v_mov_b32 v10, 0x7ffffff0")
    a("s_waitcnt vmcnt(2)")
    for q in range(8):
        a(f"v_cmp_eq_u32 vcc, v{64+q}, v5")
        a(f"v_mov_b32 v7, {q*1024}")
        a("s_nop 0")
        a("v_cndmask_b32 v10, v10, v7, vcc")
    a("v_add_u32 v10, v10, v8")
    a(f"s_add_u32 s43, s42, 0x{UPD_OFF:x}")
    a("buffer_load_dwordx4 v[56:59], v10, s[24:27], s43 offen sc1")
    a("s_lshl_b32 s34, s32, 8")
    a("s_lshl_b32 s35, s29, 5")
    a("s_add_u32 s34, s34, s35")
    a("s_lshl_b32 s34, s34, 10")
    a(f"s_add_u32 s34, s34, 0x{WOP:x}")
    for T in range(2):
        a(f"s_add_u32 s35, s34, {T*0x20000}")
        for cc in range(32):
            r = (T*32+cc)*4
            a(f"buffer_load_dwordx4 a[{r}:{r+3}], v3, s[24:27], s35 offen offset:{(cc%4)*1024}")
            if cc % 4 == 3:
                a("s_add_u32 s35, s35, 4096")
    a("v_lshlrev_b32 v4, 8, v16")
    a("v_lshl_add_u32 v4, v17, 4, v4")
    a("s_lshl_b32 s36, s30, 5")
    a("s_lshl_b32 s37, s29, 3")
    a("s_add_u32 s36, s36, s37")
    a("s_lshl_b32 s36, s36, 13")
    a("s_lshl_b32 s37, s33, 12")
    a("s_add_u32 s36, s36, s37")
    a(f"s_add_u32 s36, s36, 0x{O_OFF:x}")
    a("s_lshl_b32 s38, s30, 6")
    a(f"s_add_u32 s38, s38, 0x{CNT_OFF:x}")
    poll_eq(a, [38], ["16"])
    vm = VM(a)
    def breg(hd, c4): return 64 + (hd*4 + c4)*4
    for hd in range(8):
        for c4 in range(4):
            vm.op(f"buffer_load_dwordx4 {v4(breg(hd,c4))}, v4, s[24:27], s36 offen offset:{c4*64} sc1", (hd, c4))
        a("s_add_u32 s36, s36, 8192")
    for hd in range(8):
        for c4 in range(4):
            cc = hd*4 + c4
            vm.need((hd, c4))
            for T in range(2):
                acc = 32 + T*4
                z = "0" if cc == 0 else v4(acc)
                r = (T*32+cc)*4
                a(f"v_mfma_f32_16x16x32_bf16 {v4(acc)}, a[{r}:{r+3}], {v4(breg(hd,c4))}, {z}")
    a("s_nop 7")
    a("v_lshl_add_u32 v6, v2, 11, v3")
    a(f"v_add_u32 v6, {LDS_RED}, v6")
    for t in range(2):
        a(f"ds_write_b128 v6, {v4(32+4*t)} offset:{t*1024}")
    a("s_waitcnt lgkmcnt(0)")
    a("s_barrier")
    a("s_cmp_ge_u32 s29, 1")
    a("s_cbranch_scc1 W_LOOP")
    a(f"v_add_u32 v6, {LDS_RED}, v3")
    for T in range(2):
        for w in range(4):
            a(f"ds_read_b128 {v4(96+(T*4+w)*4)}, v6 offset:{w*2048+T*1024}")
    a("s_waitcnt lgkmcnt(0)")
    for T in range(2):
        for r in range(4):
            b = 96 + T*16 + r
            a(f"v_add_f32 v{b}, v{b}, v{b+4}")
            a(f"v_add_f32 v{b+8}, v{b+8}, v{b+12}")
        for r in range(4):
            b = 96 + T*16 + r
            a(f"v_add_f32 v{b}, v{b}, v{b+8}")
    for T in range(2):
        b = 96 + T*16
        a(f"v_cvt_pk_bf16_f32 v{84+2*T}, v{b}, v{b+1}")
        a(f"v_cvt_pk_bf16_f32 v{85+2*T}, v{b+2}, v{b+3}")
    for w in range(4):
        a(f"v_lshlrev_b32 v40, 16, v{84+w}")
        a(f"v_and_b32 v41, 0xffff0000, v{84+w}")
        a(f"v_lshlrev_b32 v42, 16, v{48+w}")
        a(f"v_and_b32 v43, 0xffff0000, v{48+w}")
        a("v_add_f32 v40, v42, v40")
        a("v_add_f32 v41, v43, v41")
        a("v_cvt_pk_bf16_f32 v44, v40, v41")
        a(f"v_lshlrev_b32 v40, 16, v{52+w}")
        a(f"v_and_b32 v41, 0xffff0000, v{52+w}")
        a(f"v_lshlrev_b32 v42, 16, v{56+w}")
        a(f"v_and_b32 v43, 0xffff0000, v{56+w}")
        a("v_add_f32 v40, v40, v42")
        a("v_add_f32 v41, v41, v43")
        a("v_cvt_pk_bf16_f32 v45, v40, v41")
        a("v_lshlrev_b32 v40, 16, v44")
        a("v_and_b32 v41, 0xffff0000, v44")
        a("v_lshlrev_b32 v42, 16, v45")
        a("v_and_b32 v43, 0xffff0000, v45")
        a("v_add_f32 v40, v40, v42")
        a("v_add_f32 v41, v41, v43")
        a(f"v_cvt_pk_bf16_f32 v{88+w}, v40, v41")
    a("buffer_store_dwordx4 v[88:91], v9, s[20:23], s42 offen")
    a("s_branch W_LOOP")

def gen_F1(a):
    a.label("W_F1")
    a("v_lshlrev_b32 v3, 4, v1")
    a("s_lshl_b32 s30, s30, 2")
    a("s_add_u32 s30, s30, s29")
    a("v_lshlrev_b32 v4, 7, v1")
    a(f"s_mov_b32 s31, 0x{R_OFF:x}")
    for i in range(8):
        a(f"buffer_load_dwordx4 {v4(64+4*i)}, v4, s[24:27], s31 offen offset:{16*i}")
    a("s_waitcnt vmcnt(0)")
    a("v_lshlrev_b32 v5, 5, v1")
    a("v_sub_u32 v5, 2047, v5")
    for i in range(32):
        r = 64 + i
        a(f"v_ashrrev_i32 v6, 31, v{r}")
        a(f"v_or_b32 v6, 0x80000000, v6")
        a(f"v_xor_b32 v{r}, v{r}, v6")
        a(f"v_and_b32 v{r}, 0xffff0000, v{r}")
        a(f"v_subrev_u32 v6, {i}, v5")
        a(f"v_or_b32 v{r}, v{r}, v6")
    a("v_mov_b32 v10, -1")
    for j in range(8):
        a("v_mov_b32 v8, 0")
        for i in range(32):
            a(f"v_cmp_lt_u32 vcc, v{64+i}, v10")
            a("s_nop 1")
            a(f"v_cndmask_b32 v6, 0, v{64+i}, vcc")
            a("v_max_u32 v8, v8, v6")
        wave_sum(a, "v8", "v9", "v_max_u32")
        a("v_mov_b32 v10, v8")
        a("s_nop 0")
        a(f"v_readfirstlane_b32 s{40+j}, v8")
    for j in range(8):
        a(f"s_and_b32 s{40+j}, s{40+j}, 0x7ff")
        a(f"s_sub_u32 s{40+j}, 2047, s{40+j}")
    a("v_and_b32 v16, 15, v1")
    a("v_lshrrev_b32 v17, 4, v1")
    a("v_and_b32 v18, 7, v16")
    a("v_mov_b32 v11, s40")
    for j in range(1, 8):
        a(f"v_cmp_eq_u32 vcc, {j}, v18")
        a(f"v_mov_b32 v12, s{40+j}")
        a("s_nop 0")
        a("v_cndmask_b32 v11, v11, v12, vcc")
    a("s_cmp_lg_u32 s30, 0")
    a("s_cbranch_scc1 W_F1A")
    a("v_lshlrev_b32 v12, 2, v11")
    a("buffer_load_dword v13, v12, s[24:27], s31 offen")
    a("v_lshlrev_b32 v12, 2, v18")
    a(f"s_mov_b32 s32, 0x{IDX_OFF:x}")
    a("buffer_store_dword v11, v12, s[24:27], s32 offen sc1")
    a("s_waitcnt vmcnt(0)")
    a("buffer_store_dword v13, v12, s[24:27], s32 offen offset:32 sc1")
    a.label("W_F1A")
    a("v_lshlrev_b32 v12, 10, v11")
    a("v_lshl_add_u32 v12, v17, 4, v12")
    for c in range(16):
        a(f"buffer_load_dwordx4 {v4(64+4*c)}, v12, s[24:27], 0 offen offset:{c*64}")
    a("s_lshl_b32 s32, s30, 15")
    a(f"s_add_u32 s33, s32, 0x{WGP:x}")
    a(f"s_add_u32 s34, s32, 0x{WUP:x}")
    for m, sb in enumerate((33, 34)):
        for i in range(32):
            r = m*128 + i*4
            a(f"buffer_load_dwordx4 a[{r}:{r+3}], v3, s[24:27], s{sb} offen offset:{(i%4)*1024}")
            if i % 4 == 3:
                a(f"s_add_u32 s{sb}, s{sb}, 4096")
    a("s_waitcnt vmcnt(0)")
    for c in range(16):
        for m in range(2):
            for T in range(2):
                acc = 40 + (m*2+T)*4
                r = m*128 + (T*16+c)*4
                z = "0" if c == 0 else v4(acc)
                a(f"v_mfma_f32_16x16x32_bf16 {v4(acc)}, a[{r}:{r+3}], {v4(64+4*c)}, {z}")
    a("s_nop 7")
    a("s_mov_b32 s35, 0xbfb8aa3b")
    for i in range(0, 8, 2):
        a(f"v_cvt_pk_bf16_f32 v4, v{40+i}, v{41+i}")
        a("v_lshlrev_b32 v5, 16, v4")
        a("v_and_b32 v6, 0xffff0000, v4")
        for g in ("v5", "v6"):
            a(f"v_mul_f32 v7, s35, {g}")
            a("v_exp_f32 v7, v7")
            a("s_nop 0")
            a("v_add_f32 v7, 1.0, v7")
            a("v_rcp_f32 v7, v7")
            a("s_nop 0")
            a(f"v_mul_f32 {g}, {g}, v7")
        a("v_cvt_pk_bf16_f32 v4, v5, v6")
        a("v_lshlrev_b32 v5, 16, v4")
        a("v_and_b32 v6, 0xffff0000, v4")
        a(f"v_cvt_pk_bf16_f32 v4, v{48+i}, v{49+i}")
        a("v_lshlrev_b32 v7, 16, v4")
        a("v_and_b32 v8, 0xffff0000, v4")
        a("v_mul_f32 v5, v5, v7")
        a("v_mul_f32 v6, v6, v8")
        a(f"v_cvt_pk_bf16_f32 v{56+i//2}, v5, v6")
    a("s_movk_i32 s35, 3584")
    a("v_mul_lo_u32 v4, v16, s35")
    a("v_lshl_add_u32 v4, v17, 4, v4")
    a("v_mov_b32 v5, 0x7ffffff0")
    a("v_cmp_gt_u32 vcc, 8, v16")
    a("s_nop 1")
    a("v_cndmask_b32 v4, v5, v4, vcc")
    a("s_lshl_b32 s36, s30, 6")
    a(f"s_add_u32 s36, s36, 0x{H_OFF:x}")
    a("buffer_store_dwordx4 v[56:59], v4, s[24:27], s36 offen sc1")
    a(f"s_mov_b32 s36, 0x{CNT_OFF+0x1000:x}")
    cnt_add(a, 36)
    a("s_branch W_LOOP")

def gen_F2(a):
    a.label("W_F2")
    a("v_and_b32 v16, 15, v1")
    a("v_lshrrev_b32 v17, 4, v1")
    a("v_mov_b32 v20, 0x7ffffff0")
    a("v_cmp_gt_u32 s[40:41], 8, v16")
    a("s_lshl_b32 s30, s30, 2")
    a("s_add_u32 s30, s30, s29")
    a("v_and_b32 v3, 7, v16")
    a("s_movk_i32 s31, 3584")
    a("v_mul_lo_u32 v3, v3, s31")
    a("v_lshl_add_u32 v3, v17, 4, v3")
    a("v_lshlrev_b32 v4, 4, v1")
    a("s_mul_i32 s32, s30, 114688")
    a(f"s_add_u32 s32, s32, 0x{WDP:x}")
    a("s_add_u32 s33, s32, 57344")
    a(f"s_mov_b32 s34, 0x{H_OFF:x}")
    a(f"s_mov_b32 s36, 0x{CNT_OFF+0x1000:x}")
    poll_eq(a, [36], [f"{N_F1}"])
    for T in range(2):
        for r in range(4):
            a(f"v_mov_b32 v{40+4*T+r}, 0")
    a("s_mov_b32 s35, 0")
    a.label("W_F2L")
    for u in range(4):
        a(f"buffer_load_dwordx4 {v4(64+12*u)}, v3, s[24:27], s34 offen offset:{u*64} sc1")
        a(f"buffer_load_dwordx4 {v4(68+12*u)}, v4, s[24:27], s32 offen offset:{u*1024}")
        a(f"buffer_load_dwordx4 {v4(72+12*u)}, v4, s[24:27], s33 offen offset:{u*1024}")
    for u in range(4):
        a(f"s_waitcnt vmcnt({9-3*u})")
        a(f"v_mfma_f32_16x16x32_bf16 v[40:43], {v4(68+12*u)}, {v4(64+12*u)}, v[40:43]")
        a(f"v_mfma_f32_16x16x32_bf16 v[44:47], {v4(72+12*u)}, {v4(64+12*u)}, v[44:47]")
    a("s_add_u32 s34, s34, 256")
    a("s_add_u32 s32, s32, 4096")
    a("s_add_u32 s33, s33, 4096")
    a("s_add_u32 s35, s35, 1")
    a("s_cmp_lt_u32 s35, 14")
    a("s_cbranch_scc1 W_F2L")
    a("v_and_b32 v5, 7, v16")
    a("v_lshlrev_b32 v5, 2, v5")
    a(f"s_mov_b32 s36, 0x{IDX_OFF+32:x}")
    a("buffer_load_dword v6, v5, s[24:27], s36 offen sc1")
    a("s_mov_b32 s55, 0xbfb8aa3b")
    a("s_waitcnt vmcnt(0)")
    a("v_mul_f32 v6, s55, v6")
    a("v_exp_f32 v6, v6")
    a("s_nop 0")
    a("v_add_f32 v6, 1.0, v6")
    a("v_rcp_f32 v6, v6")
    a("s_nop 0")
    a("v_cvt_pk_bf16_f32 v6, v6, v6")
    a("v_lshlrev_b32 v6, 16, v6")
    for i in range(0, 8, 2):
        a(f"v_cvt_pk_bf16_f32 v7, v{40+i}, v{41+i}")
        a(f"v_lshlrev_b32 v8, 16, v7")
        a(f"v_and_b32 v9, 0xffff0000, v7")
        a("v_mul_f32 v8, v8, v6")
        a("v_mul_f32 v9, v9, v6")
        a(f"v_cvt_pk_bf16_f32 v{48+i//2}, v8, v9")
    a("v_lshlrev_b32 v5, 10, v16")
    a("v_lshl_add_u32 v5, v17, 4, v5")
    a("v_cndmask_b32 v5, v20, v5, s[40:41]")
    a("s_lshl_b32 s36, s30, 6")
    a(f"s_add_u32 s36, s36, 0x{UPD_OFF:x}")
    a("buffer_store_dwordx4 v[48:51], v5, s[24:27], s36 offen sc1")
    a(f"s_mov_b32 s36, 0x{CNT_OFF+0x1040:x}")
    cnt_add(a, 36)
    a("s_branch W_LOOP")

def gen_workers(a):
    a.label("WORKER")
    a("s_load_dwordx2 s[6:7], s[0:1], 112")
    a("s_load_dwordx2 s[4:5], s[0:1], 0")
    a("s_load_dwordx2 s[8:9], s[0:1], 96")
    a("v_lshrrev_b32 v2, 6, v0")
    a("v_and_b32 v1, 63, v0")
    a(f"v_mov_b32 v30, {LDS_SLOT}")
    a("s_waitcnt lgkmcnt(0)")
    srd(a, 24, 6, WS_SIZE)
    srd(a, 16, 4, 2048*1024)
    srd(a, 20, 8, 2048*1024)
    a("s_mov_b32 s73, 0")
    if STAMP:
        a("s_mov_b32 s75, -1")
    a.label("W_LOOP")
    if STAMP:
        a("s_cmp_eq_u32 s75, -1")
        a("s_cbranch_scc1 W_ST1")
        a("s_cmp_lg_u32 s29, 0")
        a("s_cbranch_scc1 W_ST1")
        a("s_memrealtime s[76:77]")
        a("s_waitcnt lgkmcnt(0)")
        a("v_mov_b32 v28, s76")
        a("s_lshl_b32 s76, s75, 3")
        a("s_add_u32 s76, s76, 0x9000004")
        a("buffer_store_dword v28, off, s[24:27], s76")
        a.label("W_ST1")
    a("s_barrier")
    a("s_cmp_lg_u32 s29, 0")
    a("s_cbranch_scc1 W_L2")
    a("s_mov_b64 exec, 1")
    a.label("W_Q0")
    a("s_cmp_ge_u32 s73, 7")
    a("s_cbranch_scc1 W_QM")
    a("s_add_u32 s30, s74, s73")
    a("s_cmp_ge_u32 s30, 7")
    a("s_cbranch_scc0 W_Q1")
    a("s_sub_u32 s30, s30, 7")
    a.label("W_Q1")
    a("s_lshl_b32 s31, s30, 2")
    a("v_mov_b32 v28, 1")
    a("buffer_atomic_add v28, off, s[12:15], s31 offset:208 sc0 sc1")
    a("s_waitcnt vmcnt(0)")
    a("v_readfirstlane_b32 s31, v28")
    a("s_cmp_lt_u32 s30, 4")
    a("s_cbranch_scc0 W_Q4")
    a("s_cmp_ge_u32 s31, 80")
    a("s_cbranch_scc1 W_QN")
    a("s_mul_i32 s32, s31, 205")
    a("s_lshr_b32 s32, s32, 10")
    a("s_mul_i32 s33, s32, 5")
    a("s_sub_u32 s33, s31, s33")
    a("s_mul_i32 s34, s30, 5")
    a("s_add_u32 s33, s33, s34")
    a("s_branch W_QP")
    a.label("W_Q4")
    a("s_cmp_ge_u32 s31, 64")
    a("s_cbranch_scc1 W_QN")
    a("s_lshr_b32 s32, s31, 2")
    a("s_and_b32 s33, s31, 3")
    a("s_lshl_b32 s34, s30, 2")
    a("s_add_u32 s33, s33, s34")
    a("s_add_u32 s33, s33, 4")
    a.label("W_QP")
    a("s_lshl_b32 s32, s32, 5")
    a("s_add_u32 s32, s32, s33")
    a("s_add_u32 s32, s32, 0x10000")
    a("v_mov_b32 v28, s32")
    a("s_branch W_QW")
    a.label("W_QN")
    a("s_add_u32 s73, s73, 1")
    a("s_branch W_Q0")
    a.label("W_QM")
    a("v_mov_b32 v28, 1")
    a("buffer_atomic_add v28, off, s[12:15], 0 offset:192 sc0 sc1")
    a("s_waitcnt vmcnt(0)")
    a.label("W_QW")
    a("ds_write_b32 v30, v28")
    a("s_waitcnt lgkmcnt(0)")
    a("s_mov_b64 exec, -1")
    a.label("W_L2")
    a("s_barrier")
    a("ds_read_b32 v28, v30")
    a("s_waitcnt lgkmcnt(0)")
    a("v_readfirstlane_b32 s30, v28")
    if STAMP:
        a("s_mov_b32 s75, s30")
        a("s_cmp_lt_u32 s75, 0x10000")
        a("s_cbranch_scc1 W_ST2")
        a("s_sub_u32 s75, s75, 0x10000")
        a("s_add_u32 s75, s75, 4096")
        a.label("W_ST2")
        a("s_memrealtime s[76:77]")
        a("s_waitcnt lgkmcnt(0)")
        a("v_mov_b32 v28, s76")
        a("s_lshl_b32 s76, s75, 3")
        a("s_add_u32 s76, s76, 0x9000000")
        a("buffer_store_dword v28, off, s[24:27], s76")
    a("s_cmp_ge_u32 s30, 0x10000")
    a("s_cbranch_scc0 W_D0")
    a("s_sub_u32 s30, s30, 0x10000")
    a("s_branch W_P")
    a.label("W_D0")
    a(f"s_cmp_lt_u32 s30, {I_F2}")
    a("s_cbranch_scc1 W_F1")
    a(f"s_cmp_lt_u32 s30, {I_AG}")
    a("s_cbranch_scc0 W_D3")
    a(f"s_sub_u32 s30, s30, {I_F2}")
    a("s_branch W_F2")
    a.label("W_D3")
    a(f"s_cmp_ge_u32 s30, {I_END}")
    a("s_cbranch_scc1 W_EXIT")
    a(f"s_sub_u32 s30, s30, {I_AG}")
    a("s_lshr_b32 s31, s30, 4")
    a("s_mul_i32 s31, s31, 43691")
    a("s_lshr_b32 s31, s31, 17")
    a("s_mul_i32 s32, s31, 48")
    a("s_sub_u32 s32, s30, s32")
    a("s_mov_b32 s30, s31")
    a("s_cmp_lt_u32 s32, 16")
    a("s_cbranch_scc1 W_A")
    a("s_sub_u32 s32, s32, 16")
    a("s_branch W_G")
    gen_P(a)
    gen_A(a)
    gen_G(a)
    gen_F1(a)
    gen_F2(a)
    a.label("W_EXIT")
    a("s_endpgm")
```

```python
from common import *
from proj import wq, wk, wv, tokf, v4
import proj
import workers2 as workers
from workers2 import raw_T, D_INIT, N_INIT
K3_GRID = 256
ELECT_N = 32
ELECT_SPIN = 4096
LDS_MEM = 0
LDS_SC = 8192
LDS_O = 14336
LDS_WV = 18432
K3_LDS = 18432 + 131072
SPIN_MAX = 0x40000
STAMP = False
REALT = False
SAMEXCD = False
ROUND_EMU = True
DBG_OFF = 0x8000000
ACCQ = [56, 60]; ACCK = [64, 68]; ACCV = [72, 76]
def wo(i, c): r = 128 + (i*4+c)*4; return f"v[{r}:{r+3}]"

def stamp(a, i):
    if not STAMP: return
    a("s_memrealtime s[60:61]" if REALT else "s_memtime s[60:61]")
    a("s_waitcnt lgkmcnt(0)")
    a("v_mov_b32 v14, s60")
    a("s_lshl_b32 s62, s30, 6")
    a("s_lshl_b32 s63, s28, 14")
    a("s_add_u32 s62, s62, s63")
    a("s_lshl_b32 s63, s29, 12")
    a("s_add_u32 s62, s62, s63")
    a(f"s_add_u32 s62, s62, 0x{DBG_OFF + 4*i:x}")
    a("buffer_store_dword v14, off, s[24:27], s62")

def stampv(a, i, sreg):
    if not STAMP: return
    a(f"v_mov_b32 v14, s{sreg}")
    a("s_lshl_b32 s62, s30, 6")
    a("s_lshl_b32 s63, s28, 14")
    a("s_add_u32 s62, s62, s63")
    a("s_lshl_b32 s63, s29, 12")
    a("s_add_u32 s62, s62, s63")
    a(f"s_add_u32 s62, s62, 0x{DBG_OFF + 4*i:x}")
    a("buffer_store_dword v14, off, s[24:27], s62")

def stamp_items(i):
    t = Asm(); stamp(t, i)
    return [('i', l.strip()) for l in t.lines]

class Em:
    def __init__(self, a):
        self.a = a; self.n = 0; self.tags = {}; self.done = 0
    def reset(self):
        self.n = 0; self.tags = {}; self.done = 0
    def run(self, items):
        for it in items:
            k = it[0]
            if k == 'i': self.a(it[1])
            elif k == 'lab': self.a.label(it[1])
            elif k == 'ds':
                self.a(it[1]); self.n += 1
                if len(it) > 2: self.tags[it[2]] = self.n
            elif k == 'need':
                idx = self.tags[it[1]]
                if idx > self.done:
                    cnt = self.n - idx
                    self.a(f"s_waitcnt lgkmcnt({min(cnt, 15)})")
                    self.done = idx if cnt <= 15 else self.n - 15
            elif k == 'drain':
                self.a("s_waitcnt lgkmcnt(0)"); self.done = self.n
            else: raise ValueError(k)

def merge(main, fill, ratio):
    out = []; fi = 0; cnt = 0
    for it in main:
        if isinstance(it, list): out.extend(it)
        else: out.append(it)
        cnt += 1
        if cnt >= ratio and fi < len(fill):
            out.extend(fill[fi]); fi += 1; cnt = 0
    while fi < len(fill):
        out.extend(fill[fi]); fi += 1
    return out

def election(a):
    a("s_cmp_ge_u32 s2, 256")
    a("s_cbranch_scc1 K3_END")
    a("s_load_dwordx2 s[8:9], s[0:1], 104")
    a("s_getreg_b32 s3, hwreg(HW_REG_XCC_ID, 0, 4)")
    a("v_lshrrev_b32 v96, 6, v0")
    a("s_nop 0")
    a("v_readfirstlane_b32 s29, v96")
    a("s_waitcnt lgkmcnt(0)")
    srd(a, 12, 8, 256)
    a(f"v_mov_b32 v4, {LDS_SC}")
    a("s_cmp_lg_u32 s29, 0")
    a("s_cbranch_scc1 K3_EL_WAIT")
    a("s_mov_b64 exec, 1")
    a("s_and_b32 s3, s3, 7")
    a("s_lshl_b32 s11, s3, 2")
    a("v_mov_b32 v1, 1")
    a("v_mov_b32 v2, 0")
    a("buffer_atomic_add v1, v2, s[12:15], s11 offen sc0 sc1")
    a("s_waitcnt vmcnt(0)")
    a("v_readfirstlane_b32 s16, v1")
    a("s_mov_b32 s17, -1")
    a("s_mov_b32 s19, 0")
    a("s_mov_b32 s10, 0")
    a(f"s_cmp_ge_u32 s16, {ELECT_N}")
    a("s_cbranch_scc1 K3_EL_DONE")
    a("s_add_u32 s18, s3, 1")
    a(f"s_cmp_lg_u32 s16, {ELECT_N-1}")
    a("s_cbranch_scc1 K3_EL_POLL0")
    a("v_mov_b32 v6, s18")
    a("v_mov_b32 v7, 0")
    a("buffer_atomic_cmpswap v[6:7], v2, s[12:15], 0 offen offset:64 sc0 sc1")
    a("s_waitcnt vmcnt(0)")
    a.label("K3_EL_POLL0")
    a("s_mov_b32 s31, 0")
    a.label("K3_EL_POLL")
    a("buffer_load_dword v6, v2, s[12:15], 0 offen offset:64 sc0 sc1")
    a("s_waitcnt vmcnt(0)")
    a("v_readfirstlane_b32 s19, v6")
    a("s_cmp_lg_u32 s19, 0")
    a("s_cbranch_scc1 K3_EL_GOT")
    a("s_add_u32 s31, s31, 1")
    a(f"s_cmp_lt_u32 s31, {ELECT_SPIN}")
    a("s_cbranch_scc1 K3_EL_POLL")
    a("v_mov_b32 v6, 0xff")
    a("v_mov_b32 v7, 0")
    a("buffer_atomic_cmpswap v[6:7], v2, s[12:15], 0 offen offset:64 sc0 sc1")
    a("s_waitcnt vmcnt(0)")
    a("s_branch K3_EL_POLL0")
    a.label("K3_EL_GOT")
    a("s_cmp_eq_u32 s19, 0xff")
    a("s_cbranch_scc1 K3_EL_GLOBAL")
    a("s_cmp_lg_u32 s19, s18")
    a("s_cbranch_scc1 K3_EL_DONE")
    a("s_mov_b32 s17, s16")
    a("s_branch K3_EL_DONE")
    a.label("K3_EL_GLOBAL")
    a("v_mov_b32 v1, 1")
    a("buffer_atomic_add v1, v2, s[12:15], 0 offen offset:128 sc0 sc1")
    a("s_waitcnt vmcnt(0)")
    a("v_readfirstlane_b32 s16, v1")
    a("s_mov_b32 s10, 1")
    a("s_cmp_ge_u32 s16, 32")
    a("s_cbranch_scc1 K3_EL_DONE")
    a("s_mov_b32 s17, s16")
    a.label("K3_EL_DONE")
    a("v_mov_b32 v6, s17")
    a("v_mov_b32 v7, s10")
    a("v_mov_b32 v8, s19")
    a("v_mov_b32 v9, s3")
    a("ds_write_b128 v4, v[6:9]")
    a("s_waitcnt lgkmcnt(0)")
    a("s_mov_b64 exec, -1")
    a.label("K3_EL_WAIT")
    a("s_barrier")
    a("ds_read_b128 v[6:9], v4")
    a("s_waitcnt lgkmcnt(0)")
    a("v_readfirstlane_b32 s28, v6")
    a("v_readfirstlane_b32 s10, v7")
    a("v_readfirstlane_b32 s19, v8")
    a("v_readfirstlane_b32 s74, v9")
    a("s_cmp_ge_u32 s74, s19")
    a("s_cbranch_scc0 K3_RK")
    a("s_sub_u32 s74, s74, 1")
    a.label("K3_RK")
    a("s_min_u32 s74, s74, 6")
    a("s_cmp_eq_u32 s28, -1")
    a("s_cbranch_scc1 WORKER")

def gen_k3(a):
    kernel_header(a, "k23_kernel")
    election(a)
    a("s_load_dwordx2 s[6:7], s[0:1], 112")
    a("s_load_dwordx2 s[4:5], s[0:1], 8")
    a("s_load_dwordx8 s[68:75], s[0:1], 16")
    a("v_lshrrev_b32 v96, 6, v0")
    a("v_and_b32 v97, 63, v0")
    a("s_nop 0")
    a("v_readfirstlane_b32 s29, v96")
    a("s_waitcnt lgkmcnt(0)")
    srd(a, 24, 6, WS_SIZE)
    srd(a, 20, 4, 8192)
    if STAMP:
        a("s_memrealtime s[60:61]")
        a("s_waitcnt lgkmcnt(0)")
        a("v_mov_b32 v14, s60")
        a("s_lshl_b32 s62, s28, 4")
        a("s_add_u32 s62, s62, 0x9100008")
        a("buffer_store_dword v14, off, s[24:27], s62")
    a("v_lshlrev_b32 v98, 4, v97")
    a("v_lshl_add_u32 v2, v96, 15, v98")
    a(f"v_add_u32 v2, 0x{LDS_WV:x}, v2")
    a("v_lshrrev_b32 v108, 2, v97")
    a("v_and_b32 v109, 3, v97")
    a("v_lshlrev_b32 v109, 4, v109")
    a("v_lshl_add_u32 v110, v108, 13, v109")
    a("v_lshl_add_u32 v111, v108, 10, v109")
    a("v_bfe_u32 v112, v97, 2, 2")
    a("v_lshrrev_b32 v113, 4, v97")
    a("v_lshl_add_u32 v112, v113, 3, v112")
    a("v_lshl_add_u32 v112, v112, 6, v109")
    a("v_lshl_add_u32 v112, v96, 15, v112")
    a(f"v_add_u32 v112, 0x{LDS_WV:x}, v112")
    a("s_lshl_b32 s32, s28, 8")
    a("s_lshl_b32 s33, s29, 6")
    a("s_add_u32 s32, s32, s33")
    for (ptr, f) in ((68, wq), (70, wk)):
        srd(a, 60, ptr, 0x400000)
        a("s_mov_b32 s33, s32")
        for i in range(32):
            a(f"buffer_load_dwordx4 {f(i//16, i%16)}, v110, s[60:63], s33 offen")
            a("s_add_u32 s33, s33, 0x20000")
    def ohome(i):
        T, cp = i // 16, i % 16
        return wo(2*(cp//4) + T, cp % 4)
    srd(a, 60, 74, 0x400000)
    a("s_lshl_b32 s33, s28, 17")
    a("s_lshl_b32 s34, s29, 8")
    a("s_add_u32 s33, s33, s34")
    for rg in range(8):
        for pp in range(4):
            a(f"buffer_load_dwordx4 {ohome(pp*8+rg)}, v111, s[60:63], s33 offen offset:{pp*64}")
        a("s_add_u32 s33, s33, 16384")
    srd(a, 60, 72, 0x400000)
    a("s_mov_b32 s33, s32")
    for i in range(16):
        a(f"buffer_load_dwordx4 v[{24+4*i}:{27+4*i}], v110, s[60:63], s33 offen")
        a("s_add_u32 s33, s33, 0x20000")
    a("s_waitcnt vmcnt(63)")
    raw_T(a, lambda i: wq(i//16, i%16), "v2", "v112")
    a("s_waitcnt vmcnt(48)")
    raw_T(a, lambda i: wk(i//16, i%16), "v2", "v112")
    a("s_waitcnt vmcnt(16)")
    raw_T(a, ohome, "v2", "v112")
    for hf in range(2):
        a("s_waitcnt vmcnt(0)")
        for i in range(16):
            a(f"ds_write_b128 v2, v[{24+4*i}:{27+4*i}] offset:{(hf*16+i)*1024}")
        a("s_waitcnt lgkmcnt(0)")
        for c in range(8):
            for T in range(2):
                r0 = 24 + (c*2+T)*4
                for half in range(2):
                    a(f"ds_read_b64_tr_b16 v[{r0+2*half}:{r0+2*half+1}], v112 offset:{(hf*8+c)*2048 + half*256 + T*8}")
        a("s_waitcnt lgkmcnt(0)")
        for i in range(16):
            a(f"ds_write_b128 v2, v[{24+4*i}:{27+4*i}] offset:{(hf*16+i)*1024}")
        if hf == 0:
            for i in range(16):
                a(f"buffer_load_dwordx4 v[{24+4*i}:{27+4*i}], v110, s[60:63], s33 offen")
                a("s_add_u32 s33, s33, 0x20000")
    a("v_and_b32 v100, 15, v97")
    a("v_lshrrev_b32 v101, 4, v97")
    a("v_lshrrev_b32 v102, 2, v100")
    a("v_and_b32 v103, 3, v100")
    a("v_lshl_add_u32 v102, v102, 3, v103")
    a("v_mov_b32 v104, 0x7ffffff0")
    a("v_cmp_gt_u32 s[40:41], 8, v100")
    a("v_cmp_gt_u32 s[42:43], 2, v101")
    a("v_cmp_gt_u32 s[44:45], 8, v97")
    a("v_lshl_add_u32 v0, v96, 11, v98")
    a("v_and_b32 v105, 7, v100")
    a("v_lshl_add_u32 v1, v105, 2, v101")
    a("v_lshlrev_b32 v1, 4, v1")
    a("s_movk_i32 s32, 1536")
    a("v_mul_lo_u32 v4, v96, s32")
    a("v_lshl_add_u32 v106, v101, 3, v105")
    a("v_lshl_add_u32 v4, v106, 4, v4")
    a(f"v_add_u32 v4, {LDS_SC}, v4")
    a("v_lshrrev_b32 v107, 3, v100")
    a("v_lshlrev_b32 v9, 9, v107")
    a("v_lshl_add_u32 v9, v106, 4, v9")
    a(f"v_add_u32 v9, {LDS_SC+512}, v9")
    a("v_lshlrev_b32 v15, 4, v106")
    a(f"v_add_u32 v15, {LDS_SC}, v15")
    a("s_and_b64 s[42:43], s[42:43], s[40:41]")
    a("v_lshlrev_b32 v5, 8, v102")
    a("v_lshl_add_u32 v5, v96, 6, v5")
    a("v_lshl_add_u32 v5, v101, 4, v5")
    a("v_lshl_add_u32 v6, v96, 5, v102")
    a("v_lshlrev_b32 v6, 6, v6")
    a("v_lshl_add_u32 v6, v101, 4, v6")
    a("v_lshlrev_b32 v7, 13, v100")
    a("v_lshl_add_u32 v7, v96, 6, v7")
    a("v_lshl_add_u32 v7, v101, 4, v7")
    a("v_cndmask_b32 v7, v104, v7, s[40:41]")
    a("v_lshl_add_u32 v8, v96, 5, v102")
    a("v_lshlrev_b32 v8, 4, v8")
    a("v_lshl_add_u32 v8, v101, 3, v8")
    a("v_cmp_gt_u32 vcc, 2, v101")
    a("s_nop 1")
    a("v_cndmask_b32 v8, v104, v8, vcc")
    a("v_lshlrev_b32 v11, 8, v100")
    a("v_lshl_add_u32 v11, v101, 4, v11")
    a(f"v_add_u32 v11, {LDS_O}, v11")
    a("v_lshl_add_u32 v10, v96, 6, v11")
    a("v_lshlrev_b32 v12, 17, v96")
    a("v_lshrrev_b32 v103, 1, v105")
    a("v_lshl_add_u32 v12, v103, 12, v12")
    a("v_and_b32 v103, 1, v100")
    a("v_lshl_add_u32 v12, v103, 6, v12")
    a("v_lshl_add_u32 v12, v101, 4, v12")
    a("v_lshl_add_u32 v12, v107, 14, v12")
    a("v_and_b32 v13, 7, v97")
    a("v_lshlrev_b32 v13, 4, v13")
    a("v_lshl_add_u32 v13, v96, 7, v13")
    a("v_lshl_add_u32 v13, v101, 2, v13")
    a("v_cndmask_b32 v13, v104, v13, s[42:43]")
    a("v_bfe_u32 v103, v97, 2, 3")
    a("v_lshlrev_b32 v103, 10, v103")
    a("v_and_b32 v105, 3, v97")
    a("v_lshl_add_u32 v103, v105, 4, v103")
    a("v_lshrrev_b32 v105, 5, v97")
    a("v_lshl_add_u32 v105, v96, 2, v105")
    a("v_lshl_add_u32 v103, v105, 6, v103")
    a("buffer_load_dwordx4 v[16:19], v103, s[20:23], 0 offen")
    a("buffer_load_dwordx4 v[20:23], v103, s[20:23], 0 offen offset:128")
    a("s_mov_b32 s30, 0")
    a("s_lshl_b32 s46, s28, 8")
    a("s_lshl_b32 s48, s28, 13")
    a(f"s_add_u32 s47, s48, 0x{K_OFF:x}")
    a(f"s_add_u32 s48, s48, 0x{VT_OFF:x}")
    a(f"s_add_u32 s64, s46, 0x{PF_OFF:x}")
    a(f"s_add_u32 s65, s46, 0x{CF_OFF:x}")
    a("s_add_u32 s65, s65, s29")
    a("s_mov_b32 s68, s65")
    a(f"s_add_u32 s65, s29, 0x{CNT_OFF+0x2000:x}")
    a("s_lshl_b32 s66, s29, 11")
    a("s_mov_b32 s67, 0x01010101")
    a(f"s_add_u32 s49, s46, 0x{KM_OFF:x}")
    a("s_lshl_b32 s50, s28, 11")
    a(f"s_add_u32 s50, s50, 0x{VMT_OFF:x}")
    a(f"s_mov_b32 s51, 0x{MEMBUF_OFF:x}")
    a("s_lshr_b32 s52, s28, 1")
    a("s_lshl_b32 s52, s52, 9")
    a("s_and_b32 s53, s28, 1")
    a("s_lshl_b32 s53, s53, 3")
    a("s_add_u32 s52, s52, s53")
    a("s_mov_b32 s54, 0x3db504f3")
    a("s_mov_b32 s55, 0x3fb8aa3b")
    a("s_mov_b32 s56, 0xff800000")
    a("s_mov_b64 s[36:37], exec")
    a("s_mov_b32 s31, 0")
    a.label("K3_PI0")
    a(f"buffer_load_dword v3, off, s[12:15], 0 offset:{D_INIT} sc1")
    a("s_waitcnt vmcnt(0)")
    a("v_readfirstlane_b32 s32, v3")
    a("s_add_u32 s31, s31, 1")
    a(f"s_cmp_gt_u32 s31, 0x{SPIN_MAX:x}")
    a("s_cbranch_scc1 K3_END")
    a(f"s_cmp_lg_u32 s32, {N_INIT}")
    a("s_cbranch_scc1 K3_PI0")
    a("s_mov_b32 s31, 0")
    a.label("K3_PF0")
    a("buffer_load_dword v3, off, s[24:27], s64 sc1")
    a("s_waitcnt vmcnt(0)")
    a("v_readfirstlane_b32 s32, v3")
    a("s_add_u32 s31, s31, 1")
    a(f"s_cmp_gt_u32 s31, 0x{SPIN_MAX:x}")
    a("s_cbranch_scc1 K3_END")
    a("s_cmp_lg_u32 s32, s67")
    a("s_cbranch_scc1 K3_PF0")
    a("buffer_load_dwordx4 v[80:83], v5, s[24:27], s47 offen sc1")
    a("buffer_load_dwordx4 v[84:87], v5, s[24:27], s47 offen offset:1024 sc1")
    a("buffer_load_dwordx4 v[88:91], v6, s[24:27], s48 offen sc1")
    a("buffer_load_dwordx4 v[92:95], v6, s[24:27], s48 offen offset:256 sc1")
    a("s_add_u32 s64, s64, 4")
    a("buffer_load_dword v3, off, s[24:27], s64 sc1")
    a("s_waitcnt vmcnt(0)")
    a("ds_write_b128 v0, v[16:19]")
    a("ds_write_b128 v0, v[20:23] offset:1024")
    a("s_waitcnt lgkmcnt(0)")
    a("s_barrier")
    if STAMP:
        a("s_memrealtime s[60:61]")
        a("s_waitcnt lgkmcnt(0)")
        a("v_mov_b32 v14, s60")
        a("s_lshl_b32 s62, s28, 4")
        a("s_add_u32 s62, s62, 0x9100000")
        a("buffer_store_dword v14, off, s[24:27], s62")
    a("s_cmp_eq_u32 s10, 0")
    a("s_cbranch_scc1 K3_PROJ_A")
    a("s_branch K3_PROJ_B")
    gen_loop(a, STORE_A, "_A")
    gen_loop(a, " sc1", "_B")
    a.label("K3_END")
    a("s_endpgm")
    workers.gen_workers(a)
    return kernel_desc("k23_kernel", 512, 80, 256)

import os
POLL_A = os.environ.get("POLL_A", "sc1")
STORE_A = os.environ.get("STORE_A", "")
POLL_DELAY = int(os.environ.get("POLL_DELAY", "3"))
def poll_loop(a, name, sets, n, issue, done):
    S = len(sets)
    def delay():
        for _ in range(POLL_DELAY): a("s_nop 7")
    a("s_mov_b32 s31, 0")
    for k in range(S):
        issue(sets[k])
        if k < S-1: delay()
    a.label(f"{name}_L")
    for k in range(S):
        b = sets[k]
        a(f"s_waitcnt vmcnt({(S-1)*n})")
        regs = list(range(b, b+4*n))
        a(f"v_max3_u32 v14, v{regs[0]}, v{regs[1]}, v{regs[2]}")
        i = 3
        while i + 1 < len(regs):
            a(f"v_max3_u32 v14, v14, v{regs[i]}, v{regs[i+1]}"); i += 2
        if i < len(regs):
            a(f"v_max_u32 v14, v14, v{regs[i]}")
        a("v_cmp_eq_u32 vcc, -1, v14")
        a("s_add_u32 s31, s31, 1")
        a(f"s_cbranch_vccz {name}_D{k}")
        issue(b)
        if k < S-1: delay()
    a(f"s_cmp_gt_u32 s31, 0x{SPIN_MAX:x}")
    a("s_cbranch_scc1 K3_END")
    for _ in range(POLL_DELAY-1): a("s_nop 7")
    a(f"s_branch {name}_L")
    for k in range(S):
        a.label(f"{name}_D{k}")
        done(sets[k])
        if k < S-1: a(f"s_branch {name}_E")
    a.label(f"{name}_E")

def gen_loop(a, ST, SFX):
    LD = "sc1" if SFX == "_B" else POLL_A
    a.label(f"K3_STEP{SFX}")
    stamp(a, 0)
    def m_issue(b):
        a(f"buffer_load_dwordx4 v[{b}:{b+3}], v0, s[24:27], s51 offen {LD}")
        a(f"buffer_load_dwordx4 v[{b+4}:{b+7}], v0, s[24:27], s51 offen offset:1024 {LD}")
    def m_done(b):
        a(f"ds_write_b128 v0, v[{b}:{b+3}]")
        a(f"ds_write_b128 v0, v[{b+4}:{b+7}] offset:1024")
    poll_loop(a, f"K3_PM{SFX}", [96, 104, 112], 2, m_issue, m_done)
    a("buffer_store_dwordx2 v[120:121], v8, s[24:27], s50 offen sc1")
    a("buffer_store_dwordx2 v[122:123], v8, s[24:27], s50 offen offset:64 sc1")
    a("v_mov_b32 v14, 1")
    a("s_mov_b64 exec, 1")
    a("buffer_store_byte v14, off, s[24:27], s65 sc1")
    a("s_mov_b64 exec, s[36:37]")
    a("s_mov_b32 s65, s68")
    a("s_add_u32 s68, s68, 4")
    for r in range(4):
        a(f"v_mov_b32 v{124+r}, -1")
    for i in range(4):
        a(f"buffer_store_dwordx4 v[124:127], v0, s[24:27], s57 offen offset:{i*1024}{ST}")
    a("s_add_u32 s50, s50, 0x10000")
    a("s_add_u32 s48, s48, 0x40000")
    a("buffer_load_dwordx4 v[88:91], v6, s[24:27], s48 offen sc1")
    a("buffer_load_dwordx4 v[92:95], v6, s[24:27], s48 offen offset:256 sc1")
    a("s_waitcnt lgkmcnt(0)")
    a("s_barrier")
    a.label(f"K3_PROJ{SFX}")
    stamp(a, 1)
    stampv(a, 10, 31)
    em = Em(a)
    I = lambda s: ('i', s)
    items = []
    def mreg(c): return 16 + 4*(c % 4)
    def treg(c, k): return 32 + 12*(c % 2) + 4*k
    for c in range(4):
        items.append(('ds', f"ds_read_b128 {v4(mreg(c))}, v1 offset:{c*512}", ('m', c)))
    for c in range(16):
        items.append(('need', ('m', c)))
        for T in range(2):
            z = "0" if c == 0 else v4(ACCQ[T])
            items.append(I(f"v_mfma_f32_16x16x32_bf16 {v4(ACCQ[T])}, {wq(T,c)}, {v4(mreg(c))}, {z}"))
        for T in range(2):
            z = "0" if c == 0 else v4(ACCK[T])
            items.append(I(f"v_mfma_f32_16x16x32_bf16 {v4(ACCK[T])}, {wk(T,c)}, {v4(mreg(c))}, {z}"))
        if c + 4 < 16:
            items.append(('ds', f"ds_read_b128 {v4(mreg(c+4))}, v1 offset:{(c+4)*512}", ('m', c+4)))
        if c in (12, 13):
            cc = c - 12
            items.append(('ds', f"ds_read_b128 {v4(treg(cc,0))}, v1 offset:{cc*512}"))
            items.append(('ds', f"ds_read_b128 {v4(treg(cc,1))}, v2 offset:{2*cc*1024}"))
            items.append(('ds', f"ds_read_b128 {v4(treg(cc,2))}, v2 offset:{(2*cc+1)*1024}", ('t', cc)))
    em.run(items)
    stamp(a, 2)
    F = []
    for c in range(16):
        g = [('need', ('t', c))]
        for T in range(2):
            z = "0" if c == 0 else v4(ACCV[T])
            g.append(I(f"v_mfma_f32_16x16x32_bf16 {v4(ACCV[T])}, {v4(treg(c,0))}, {v4(treg(c,1+T))}, {z}"))
        F.append(g)
        if c + 2 < 16:
            cc = c + 2
            F.append([('ds', f"ds_read_b128 {v4(treg(cc,0))}, v1 offset:{cc*512}"),
                      ('ds', f"ds_read_b128 {v4(treg(cc,1))}, v2 offset:{2*cc*1024}"),
                      ('ds', f"ds_read_b128 {v4(treg(cc,2))}, v2 offset:{(2*cc+1)*1024}", ('t', cc))])
    M = []
    pre = F[0] + F[1] + F[2] + F[3]
    Frest = F[4:]
    M.append(I("s_waitcnt vmcnt(9)"))
    M.append(I(f"v_cvt_pk_bf16_f32 v96, v{ACCQ[0]}, v{ACCQ[0]+1}"))
    M.append(I(f"v_cvt_pk_bf16_f32 v97, v{ACCQ[0]+2}, v{ACCQ[0]+3}"))
    M.append(I(f"v_cvt_pk_bf16_f32 v98, v{ACCQ[1]}, v{ACCQ[1]+1}"))
    M.append(I(f"v_cvt_pk_bf16_f32 v99, v{ACCQ[1]+2}, v{ACCQ[1]+3}"))
    M.append(I(f"v_cvt_pk_bf16_f32 v100, v{ACCK[0]}, v{ACCK[0]+1}"))
    M.append(I(f"v_cvt_pk_bf16_f32 v101, v{ACCK[0]+2}, v{ACCK[0]+3}"))
    M.append(I(f"v_cvt_pk_bf16_f32 v102, v{ACCK[1]}, v{ACCK[1]+1}"))
    M.append(I(f"v_cvt_pk_bf16_f32 v103, v{ACCK[1]+2}, v{ACCK[1]+3}"))
    M.append(I("s_nop 1"))
    M.append(I("v_mfma_f32_16x16x32_bf16 v[104:107], v[100:103], v[96:99], 0"))
    M.append(I("v_mfma_f32_16x16x32_bf16 v[108:111], v[80:83], v[96:99], 0"))
    M.append(I("v_mfma_f32_16x16x32_bf16 v[112:115], v[84:87], v[96:99], 0"))
    M.append(I("buffer_store_dwordx4 v[100:103], v7, s[24:27], s49 offen sc1"))
    M.append(I("v_readfirstlane_b32 s32, v3"))
    M.append(I("s_add_u32 s47, s47, 0x40000"))
    M.append(I("s_cmp_eq_u32 s32, s67"))
    M.append(I(f"s_cbranch_scc0 K3_PFSLOW{SFX}"))
    M.append(('lab', f"K3_PFOK{SFX}"))
    M.append(I("buffer_load_dwordx4 v[80:83], v5, s[24:27], s47 offen sc1"))
    M.append(I("buffer_load_dwordx4 v[84:87], v5, s[24:27], s47 offen offset:1024 sc1"))
    M.append(I("s_add_u32 s64, s64, 4"))
    M.append(I("buffer_load_dword v3, off, s[24:27], s64 sc1"))
    M.append([I("s_mov_b64 exec, s[40:41]"),
              ('ds', "ds_write_b128 v4, v[104:107]"),
              ('ds', "ds_write_b128 v4, v[108:111] offset:512"),
              ('ds', "ds_write_b128 v4, v[112:115] offset:1024"),
              I("s_mov_b64 exec, s[36:37]")])
    M.append(('drain',))
    M.append(I("s_barrier"))
    if STAMP: M.append(stamp_items(3))
    for w in range(4):
        M.append(('ds', f"ds_read_b128 v[{96+4*w}:{99+4*w}], v9 offset:{w*1536}"))
    for w in range(4):
        M.append(('ds', f"ds_read_b128 v[{112+4*w}:{115+4*w}], v15 offset:{w*1536}", ('sc', w)))
    M.append(('need', ('sc', 3)))
    for base in (96, 112):
        for i in (0, 2):
            M.append(I(f"v_pk_add_f32 v[{base+i}:{base+1+i}], v[{base+i}:{base+1+i}], v[{base+4+i}:{base+5+i}]"))
            M.append(I(f"v_pk_add_f32 v[{base+8+i}:{base+9+i}], v[{base+8+i}:{base+9+i}], v[{base+12+i}:{base+13+i}]"))
    for i in (0, 2):
        M.append(I(f"v_pk_add_f32 v[{104+i}:{105+i}], v[{96+i}:{97+i}], v[{104+i}:{105+i}]"))
        M.append(I(f"v_pk_add_f32 v[{108+i}:{109+i}], v[{112+i}:{113+i}], v[{120+i}:{121+i}]"))
    b = 104
    for i in range(0, 8, 2):
        M.append(I(f"v_cvt_pk_bf16_f32 v{96+i//2}, v{b+i}, v{b+1+i}"))
    for i in range(0, 8, 2):
        M.append(I(f"v_lshlrev_b32 v{b+i}, 16, v{96+i//2}"))
        M.append(I(f"v_and_b32 v{b+1+i}, 0xffff0000, v{96+i//2}"))
    for i in range(8):
        M.append(I(f"v_mul_f32 v{b+i}, s54, v{b+i}"))
    for i in range(0, 8, 2):
        M.append(I(f"v_cvt_pk_bf16_f32 v{96+i//2}, v{b+i}, v{b+1+i}"))
    for i in range(0, 8, 2):
        M.append(I(f"v_lshlrev_b32 v{b+i}, 16, v{96+i//2}"))
        M.append(I(f"v_and_b32 v{b+1+i}, 0xffff0000, v{96+i//2}"))
    M.append(I("v_mov_b32 v14, s56"))
    for i in range(4, 8):
        M.append(I(f"v_cndmask_b32 v{b+i}, v14, v{b+i}, s[42:43]"))
    M.append(I(f"v_max3_f32 v14, v{b}, v{b+1}, v{b+2}"))
    M.append(I(f"v_max3_f32 v100, v{b+3}, v{b+4}, v{b+5}"))
    M.append(I(f"v_max3_f32 v14, v14, v{b+6}, v{b+7}"))
    M.append(I("v_max_f32 v14, v14, v100"))
    def xrow(v, t, op):
        M.append(I("s_nop 1"))
        M.append(I(f"{op}_dpp {v}, {v}, {v} row_ror:8 row_mask:0xf bank_mask:0xf"))
        M.append(I(f"v_mov_b32 {t}, {v}"))
        M.append(I("s_nop 1"))
        M.append(I(f"v_permlane16_swap_b32 {v}, {t}"))
        M.append(I("s_nop 1"))
        M.append(I(f"{op} {v}, {v}, {t}"))
        M.append(I(f"v_mov_b32 {t}, {v}"))
        M.append(I("s_nop 1"))
        M.append(I(f"v_permlane32_swap_b32 {v}, {t}"))
        M.append(I("s_nop 1"))
        M.append(I(f"{op} {v}, {v}, {t}"))
    xrow("v14", "v100", "v_max_f32")
    if STAMP: M.append([I("v_mov_b32 v101, v14")] + stamp_items(9) + [I("v_mov_b32 v14, v101")])
    M.append(I("v_mul_f32 v14, s55, v14"))
    for i in range(8):
        M.append(I(f"v_fma_f32 v{b+i}, v{b+i}, s55, -v14"))
    for i in range(8):
        M.append(I(f"v_exp_f32 v{b+i}, v{b+i}"))
    M.append(I("s_nop 0"))
    M.append(I(f"v_add_f32 v14, v{b}, v{b+1}"))
    M.append(I(f"v_add_f32 v100, v{b+2}, v{b+3}"))
    for i in range(4, 8, 2):
        M.append(I(f"v_add_f32 v14, v14, v{b+i}"))
        M.append(I(f"v_add_f32 v100, v100, v{b+i+1}"))
    M.append(I("v_add_f32 v14, v14, v100"))
    xrow("v14", "v100", "v_add_f32")
    M.append(I("v_rcp_f32 v14, v14"))
    M.append(I("s_nop 0"))
    for i in range(8):
        M.append(I(f"v_mul_f32 v{b+i}, v{b+i}, v14"))
    M.append(I(f"v_cvt_pk_bf16_f32 v112, v{b}, v{b+1}"))
    M.append(I(f"v_cvt_pk_bf16_f32 v113, v{b+2}, v{b+3}"))
    M.append(I(f"v_cvt_pk_bf16_f32 v116, v{b+4}, v{b+5}"))
    M.append(I(f"v_cvt_pk_bf16_f32 v117, v{b+6}, v{b+7}"))
    M.append(I("s_nop 0"))
    M.append(I("v_mov_b32_dpp v114, v112 row_ror:8 row_mask:0xf bank_mask:0xf"))
    M.append(I("v_mov_b32_dpp v115, v113 row_ror:8 row_mask:0xf bank_mask:0xf"))
    em.run(pre + merge(M, Frest, 4))
    stamp(a, 4)
    a("s_nop 7")
    a(f"v_cvt_pk_bf16_f32 v120, v{ACCV[0]}, v{ACCV[0]+1}")
    a(f"v_cvt_pk_bf16_f32 v121, v{ACCV[0]+2}, v{ACCV[0]+3}")
    a(f"v_cvt_pk_bf16_f32 v122, v{ACCV[1]}, v{ACCV[1]+1}")
    a(f"v_cvt_pk_bf16_f32 v123, v{ACCV[1]+2}, v{ACCV[1]+3}")
    a("s_cmp_eq_u32 s30, 63")
    a(f"s_cbranch_scc1 K3_LAST{SFX}")
    a("s_waitcnt vmcnt(4)")
    a("v_mfma_f32_16x16x32_bf16 v[96:99], v[88:91], v[112:115], 0")
    a("v_mfma_f32_16x16x32_bf16 v[100:103], v[92:95], v[112:115], 0")
    a("v_mfma_f32_16x16x16_bf16 v[96:99], v[120:121], v[116:117], v[96:99]")
    a("v_mfma_f32_16x16x16_bf16 v[100:103], v[122:123], v[116:117], v[100:103]")
    a("s_nop 0")
    a("s_nop 3")
    a("v_cvt_pk_bf16_f32 v104, v96, v97")
    a("v_cvt_pk_bf16_f32 v105, v98, v99")
    a("v_cvt_pk_bf16_f32 v106, v100, v101")
    a("v_cvt_pk_bf16_f32 v107, v102, v103")
    a("ds_write_b128 v10, v[104:107]")
    a("s_waitcnt lgkmcnt(0)")
    a("s_barrier")
    for c in range(4):
        a(f"ds_read_b128 {v4(16+4*c)}, v11 offset:{c*64}")
    for c in range(4):
        a(f"s_waitcnt lgkmcnt({3-c})")
        for i in range(8):
            acc = 32 + 4*i
            z = "0" if c == 0 else v4(acc)
            a(f"v_mfma_f32_16x16x32_bf16 {v4(acc)}, {wo(i,c)}, {v4(16+4*c)}, {z}")
    stamp(a, 5)
    a("s_and_b32 s32, s30, 1")
    a("s_lshl_b32 s32, s32, 19")
    a("s_lshl_b32 s33, s28, 7")
    a("s_add_u32 s57, s32, s33")
    a(f"s_add_u32 s57, s57, 0x{PART_OFF:x}")
    a("s_nop 0")
    for p in range(4):
        acc = 32 + 8*p
        for r in range(4):
            a(f"v_mov_b32_dpp v{acc+r}, v{acc+4+r} row_shr:8 row_mask:0xf bank_mask:0xc")
        a(f"buffer_store_dwordx4 {v4(acc)}, v12, s[24:27], s57 offen{ST}")
        if p < 3:
            a("s_add_u32 s57, s57, 32768")
    stamp(a, 6)
    a("s_add_u32 s51, s51, 8192")
    a("s_lshl_b32 s33, s28, 14")
    a("s_add_u32 s57, s32, s33")
    a(f"s_add_u32 s57, s57, 0x{PART_OFF:x}")
    a("s_add_u32 s57, s57, s66")
    def p_issue(b):
        for i in range(4):
            a(f"buffer_load_dwordx4 v[{b+4*i}:{b+3+4*i}], v0, s[24:27], s57 offen offset:{i*1024} {LD}")
    def p_done(b):
        for i in (0, 2):
            a(f"v_pk_add_f32 v[{96+i}:{97+i}], v[{b+i}:{b+1+i}], v[{b+4+i}:{b+5+i}]")
            a(f"v_pk_add_f32 v[{104+i}:{105+i}], v[{b+8+i}:{b+9+i}], v[{b+12+i}:{b+13+i}]")
    poll_loop(a, f"K3_PP{SFX}", [16, 56, 32], 4, p_issue, p_done)
    stamp(a, 7)
    stampv(a, 11, 31)
    for i in (0, 2):
        a(f"v_pk_add_f32 v[{96+i}:{97+i}], v[{96+i}:{97+i}], v[{104+i}:{105+i}]")
    a("s_nop 1")
    for r in range(4):
        a(f"v_add_f32_dpp v{100+r}, v{96+r}, v{96+r} row_ror:8 row_mask:0xf bank_mask:0xf")
    a("s_nop 1")
    a("v_permlane16_swap_b32 v100, v102")
    a("v_permlane16_swap_b32 v101, v103")
    a("s_nop 1")
    a("v_add_f32 v96, v100, v102")
    a("v_add_f32 v97, v101, v103")
    a("v_mov_b32 v98, v96")
    a("v_mov_b32 v99, v97")
    a("s_nop 1")
    a("v_permlane32_swap_b32 v96, v98")
    a("v_permlane32_swap_b32 v97, v99")
    a("s_nop 1")
    a("v_add_f32 v96, v96, v98")
    a("v_add_f32 v97, v97, v99")
    a("v_cvt_pk_bf16_f32 v96, v96, v97")
    a("v_mov_b32 v14, -2")
    a("v_min_u32 v96, v96, v14")
    a("s_add_u32 s58, s51, s52")
    a(f"buffer_store_dword v96, v13, s[24:27], s58 offen{ST}")
    stamp(a, 8)
    a("s_add_u32 s30, s30, 1")
    a("s_add_u32 s49, s49, 0x10000")
    a(f"s_branch K3_STEP{SFX}")
    a.label(f"K3_LAST{SFX}")
    if STAMP:
        a("s_memrealtime s[60:61]")
        a("s_waitcnt lgkmcnt(0)")
        a("v_mov_b32 v14, s60")
        a("s_lshl_b32 s62, s28, 4")
        a("s_add_u32 s62, s62, 0x9100004")
        a("buffer_store_dword v14, off, s[24:27], s62")
    a("buffer_store_dwordx2 v[120:121], v8, s[24:27], s50 offen sc1")
    a("buffer_store_dwordx2 v[122:123], v8, s[24:27], s50 offen offset:64 sc1")
    a("s_waitcnt vmcnt(0)")
    a("v_mov_b32 v14, 1")
    a("s_mov_b64 exec, 1")
    a("buffer_store_byte v14, off, s[24:27], s65 sc1")
    a("buffer_store_byte v14, off, s[24:27], s65 offset:4 sc1")
    a("s_endpgm")
    a.label(f"K3_PFSLOW{SFX}")
    a("s_cmp_eq_u32 s30, 63")
    a(f"s_cbranch_scc1 K3_PFOK{SFX}")
    a("s_mov_b32 s31, 0")
    a.label(f"K3_PFS2{SFX}")
    a("buffer_load_dword v3, off, s[24:27], s64 sc1")
    a("s_waitcnt vmcnt(0)")
    a("v_readfirstlane_b32 s32, v3")
    a("s_add_u32 s31, s31, 1")
    a(f"s_cmp_gt_u32 s31, 0x{SPIN_MAX:x}")
    a("s_cbranch_scc1 K3_END")
    a("s_cmp_lg_u32 s32, s67")
    a(f"s_cbranch_scc1 K3_PFS2{SFX}")
    a(f"s_branch K3_PFOK{SFX}")
```

```python
from common import *
import proj
from proj import wq, wk, wv, tokf, v4, load_qkv_weights, proj_step
import k2
SPIN_W = 0x200000
STAMP = False
LDS_SLOT = 0
LDS_RED = 1024
N_F1 = 14
N_F2 = 4
N_PK = 296
I_F1 = N_PK
I_F2 = I_F1 + N_F1
N_INIT = 59
N_U0 = N_INIT + 128
D_LN = 68; D_INIT = 240; D_PKO = 244; D_PKG = 248; D_PKD = 252
I_AG = I_F2 + N_F2
PER_SEG = 48
I_END = I_AG + 64*PER_SEG

def flag_store(a, vm, saddr):
    a("s_mov_b64 exec, 1")
    vm.op(f"buffer_store_byte v28, off, s[24:27], s{saddr} sc1")
    a("s_mov_b64 exec, -1")

def cnt_add(a, saddr):
    a("s_waitcnt vmcnt(0)")
    a("s_barrier")
    lab = a.newlabel("CA")
    a("s_cmp_lg_u32 s29, 0")
    a(f"s_cbranch_scc1 {lab}")
    a("s_mov_b64 exec, 1")
    a("v_mov_b32 v28, 1")
    a(f"buffer_atomic_add v28, off, s[24:27], s{saddr} sc1")
    a("s_mov_b64 exec, -1")
    a.label(lab)

def dbg_add(a, off, val_sgpr_or_lit, soff="0"):
    a("s_waitcnt vmcnt(0)")
    a("s_barrier")
    lab = a.newlabel("DA")
    a("s_cmp_lg_u32 s29, 0")
    a(f"s_cbranch_scc1 {lab}")
    a("s_mov_b64 exec, 1")
    a(f"v_mov_b32 v28, {val_sgpr_or_lit}")
    a(f"buffer_atomic_add v28, off, s[12:15], {soff} offset:{off} sc1")
    a("s_mov_b64 exec, -1")
    a.label(lab)

def poll_dbg(a, offs, vals):
    lab = a.newlabel("PD")
    a("s_mov_b32 s31, 0")
    a.label(lab)
    for i, o in enumerate(offs):
        a(f"buffer_load_dword v{24+i}, off, s[12:15], 0 offset:{o} sc1")
    a("s_add_u32 s31, s31, 1")
    a(f"s_cmp_gt_u32 s31, 0x{SPIN_W:x}")
    a("s_cbranch_scc1 W_EXIT")
    a("s_waitcnt vmcnt(0)")
    for i, o in enumerate(offs):
        a(f"v_readfirstlane_b32 s{70+i}, v{24+i}")
    for i, o in enumerate(offs):
        a(f"s_cmp_lg_u32 s{70+i}, {vals[i]}")
        a(f"s_cbranch_scc1 {lab}")

def raw_T(a, home, lds_w, lds_r, nload=32):
    for i in range(32):
        a(f"ds_write_b128 {lds_w}, {home(i)} offset:{i*1024}")
    a("s_waitcnt lgkmcnt(0)")
    for T in range(2):
        for c in range(16):
            h = home(T*16+c)
            pre, rng = h[0], h[2:-1].split(":")
            r0 = int(rng[0])
            for half in range(2):
                a(f"ds_read_b64_tr_b16 {pre}[{r0+2*half}:{r0+2*half+1}], {lds_r} offset:{c*2048 + half*256 + T*8}")
    a("s_waitcnt lgkmcnt(0)")

def poll_eq(a, saddrs, vals, vt=28):
    lab = a.newlabel("PL")
    a("s_mov_b32 s31, 0")
    a.label(lab)
    for i, sa in enumerate(saddrs):
        a(f"buffer_load_dword v{vt+i}, off, s[24:27], s{sa} sc1")
    a("s_add_u32 s31, s31, 1")
    a(f"s_cmp_gt_u32 s31, 0x{SPIN_W:x}")
    a("s_cbranch_scc1 W_EXIT")
    a("s_waitcnt vmcnt(0)")
    for i, sa in enumerate(saddrs):
        a(f"v_readfirstlane_b32 s{70+i}, v{vt+i}")
    for i, sa in enumerate(saddrs):
        a(f"s_cmp_lg_u32 s{70+i}, {vals[i]}")
        a(f"s_cbranch_scc1 {lab}")

LDS_TOK = 2048
def gen_P(a):
    a.label("W_P")
    a("s_and_b32 s28, s30, 31")
    a("s_lshr_b32 s30, s30, 5")
    a("s_load_dwordx4 s[40:43], s[0:1], 16")
    a("s_load_dwordx2 s[44:45], s[0:1], 32")
    a("v_lshlrev_b32 v3, 4, v1")
    a("v_and_b32 v4, 15, v1")
    a("v_lshrrev_b32 v5, 4, v1")
    a("v_lshrrev_b32 v6, 2, v4")
    a("v_and_b32 v7, 3, v4")
    a("v_lshl_add_u32 v6, v6, 3, v7")
    a("v_lshlrev_b32 v8, 10, v6")
    a("v_lshl_add_u32 v8, v5, 4, v8")
    a("v_lshrrev_b32 v9, 2, v1")
    a("v_lshlrev_b32 v9, 13, v9")
    a("v_and_b32 v10, 3, v1")
    a("v_lshl_add_u32 v9, v10, 4, v9")
    a("s_lshl_b32 s32, s28, 8")
    a("s_lshl_b32 s33, s29, 6")
    a("s_add_u32 s32, s32, s33")
    a("s_waitcnt lgkmcnt(0)")
    srd(a, 48, 40, 0x400000)
    srd(a, 52, 42, 0x400000)
    srd(a, 56, 44, 0x400000)
    for (sr, f) in ((48, wq), (52, wk)):
        a("s_mov_b32 s33, s32")
        for i in range(32):
            a(f"buffer_load_dwordx4 {f(i//16, i%16)}, v9, s[{sr}:{sr+3}], s33 offen")
            a("s_add_u32 s33, s33, 0x20000")
    a("v_lshl_add_u32 v11, v2, 15, v3")
    a(f"v_add_u32 v11, {LDS_TOK}, v11")
    a("v_lshrrev_b32 v12, 2, v4")
    a("v_lshl_add_u32 v12, v5, 3, v12")
    a("v_lshlrev_b32 v12, 6, v12")
    a("v_lshl_add_u32 v12, v7, 4, v12")
    a("v_lshl_add_u32 v12, v2, 15, v12")
    a(f"v_add_u32 v12, {LDS_TOK}, v12")
    a("s_waitcnt vmcnt(32)")
    raw_T(a, lambda i: wq(i//16, i%16), "v11", "v12")
    a("s_mov_b32 s33, s32")
    for i in range(32):
        a(f"buffer_load_dwordx4 {wv(i//16, i%16)}, v9, s[56:59], s33 offen")
        a("s_add_u32 s33, s33, 0x20000")
    a("s_waitcnt vmcnt(32)")
    raw_T(a, lambda i: wk(i//16, i%16), "v11", "v12")
    a("s_lshr_b32 s34, s30, 2")
    a("s_lshl_b32 s34, s34, 2")
    lab = "W_PLN"
    a("s_mov_b32 s31, 0")
    a.label(lab)
    a(f"buffer_load_dword v24, off, s[12:15], s34 offset:{D_LN} sc1")
    a(f"buffer_load_dword v25, off, s[12:15], 0 offset:{D_INIT} sc1")
    a("s_add_u32 s31, s31, 1")
    a(f"s_cmp_gt_u32 s31, 0x{SPIN_W:x}")
    a("s_cbranch_scc1 W_EXIT")
    a("s_waitcnt vmcnt(0)")
    a("v_readfirstlane_b32 s70, v24")
    a("v_readfirstlane_b32 s71, v25")
    a("s_and_b32 s35, s30, 3")
    a("s_lshl_b32 s35, s35, 3")
    a("s_lshr_b32 s70, s70, s35")
    a("s_and_b32 s70, s70, 0xff")
    a("s_cmp_lg_u32 s70, 8")
    a(f"s_cbranch_scc1 {lab}")
    a(f"s_cmp_lg_u32 s71, {N_INIT}")
    a(f"s_cbranch_scc1 {lab}")
    a("s_lshl_b32 s34, s30, 17")
    a("s_lshl_b32 s35, s29, 15")
    a("s_add_u32 s34, s34, s35")
    a("s_add_u32 s35, s34, 4096")
    for c in range(16):
        a(f"buffer_load_dwordx4 {v4(64+4*c)}, v8, s[24:27], s34 offen offset:{c*64} sc1")
    raw_T(a, lambda i: wv(i//16, i%16), "v11", "v12")
    a("s_waitcnt vmcnt(0)")
    for c in range(16):
        a(f"ds_write_b128 v11, {v4(64+4*c)} offset:{c*1024}")
    a("s_waitcnt lgkmcnt(0)")
    for c in range(16):
        a(f"buffer_load_dwordx4 {v4(64+4*c)}, v8, s[24:27], s35 offen offset:{c*64} sc1")
    a("v_lshlrev_b32 v9, 8, v6")
    a("v_lshl_add_u32 v9, v5, 4, v9")
    a("v_lshl_add_u32 v9, v2, 6, v9")
    a("v_lshl_add_u32 v10, v2, 5, v6")
    a("v_lshlrev_b32 v10, 6, v10")
    a("v_lshl_add_u32 v10, v5, 4, v10")
    a("v_mov_b32 v28, 1")
    a(f"v_add_u32 v29, {LDS_TOK}, v3")
    a(f"v_add_u32 v31, {LDS_TOK+65536}, v3")
    a("s_lshl_b32 s35, s30, 7")
    a("s_add_u32 s35, s35, s28")
    a("s_lshl_b32 s35, s35, 13")
    a(f"s_add_u32 s36, s35, 0x{VT_OFF:x}")
    a(f"s_add_u32 s37, s35, 0x{K_OFF:x}")
    a(f"s_add_u32 s35, s35, 0x{Q_OFF:x}")
    a("s_lshl_b32 s38, s28, 6")
    a("s_lshl_b32 s39, s30, 2")
    a("s_add_u32 s38, s38, s39")
    a("s_lshl_b32 s38, s38, 2")
    a("s_add_u32 s38, s38, s29")
    a(f"s_add_u32 s38, s38, 0x{PF_OFF:x}")
    a("s_waitcnt vmcnt(0)")
    for c in range(16):
        a(f"ds_write_b128 v11, {v4(64+4*c)} offset:{(16+c)*1024}")
    a("s_waitcnt lgkmcnt(0)")
    a("s_barrier")
    import k23s as k23
    em = k23.Em(a)
    def rd(n, c):
        base = "v29" if n < 4 else "v31"
        em.run([('ds', f"ds_read_b128 {tokf(c)}, {base} offset:{(n%4)*16384 + c*1024}", ('t', n, c))])
    for c in range(16): rd(0, c)
    vm = VM(a)
    ACCQ, ACCK, ACCV = proj.ACCQ, proj.ACCK, proj.ACCV
    pend = None
    for n in range(8):
        Tt = n & 1
        last = n == 7
        for c in range(16):
            em.run([('need', ('t', n, c))])
            proj_step(a, c)
            if not last: rd(n+1, c)
        if pend is not None:
            vm.need(pend)
            flag_store(a, vm, 38)
            a("s_add_u32 s38, s38, 4")
            pend = None
        a("s_nop 7")
        a(f"v_cvt_pk_bf16_f32 v12, v{ACCQ[0]}, v{ACCQ[0]+1}")
        a(f"v_cvt_pk_bf16_f32 v13, v{ACCQ[0]+2}, v{ACCQ[0]+3}")
        a(f"v_cvt_pk_bf16_f32 v14, v{ACCQ[1]}, v{ACCQ[1]+1}")
        a(f"v_cvt_pk_bf16_f32 v15, v{ACCQ[1]+2}, v{ACCQ[1]+3}")
        vm.op(f"buffer_store_dwordx4 v[12:15], v9, s[24:27], s35 offen offset:{Tt*1024} sc1")
        a(f"v_cvt_pk_bf16_f32 v16, v{ACCK[0]}, v{ACCK[0]+1}")
        a(f"v_cvt_pk_bf16_f32 v17, v{ACCK[0]+2}, v{ACCK[0]+3}")
        a(f"v_cvt_pk_bf16_f32 v18, v{ACCK[1]}, v{ACCK[1]+1}")
        a(f"v_cvt_pk_bf16_f32 v19, v{ACCK[1]+2}, v{ACCK[1]+3}")
        vm.op(f"buffer_store_dwordx4 v[16:19], v9, s[24:27], s37 offen offset:{Tt*1024} sc1")
        for T in range(2):
            a(f"v_cvt_pk_bf16_f32 v{20+4*T+2*Tt}, v{ACCV[T]}, v{ACCV[T]+1}")
            a(f"v_cvt_pk_bf16_f32 v{21+4*T+2*Tt}, v{ACCV[T]+2}, v{ACCV[T]+3}")
        if Tt == 1:
            vm.op("buffer_store_dwordx4 v[20:23], v10, s[24:27], s36 offen sc1")
            vm.op("buffer_store_dwordx4 v[24:27], v10, s[24:27], s36 offen offset:256 sc1", ('st', n))
            pend = ('st', n)
            a("s_add_u32 s35, s35, 0x40000")
            a("s_add_u32 s36, s36, 0x40000")
            a("s_add_u32 s37, s37, 0x40000")
        a("s_nop 1")
    vm.need(pend)
    flag_store(a, vm, 38)
    a("s_branch W_LOOP")

def gen_A(a):
    a.label("W_A")
    a("s_lshl_b32 s28, s32, 1")
    a("s_lshr_b32 s33, s29, 1")
    a("s_add_u32 s28, s28, s33")
    a("s_and_b32 s33, s29, 1")
    a("v_and_b32 v16, 15, v1")
    a("v_lshrrev_b32 v17, 4, v1")
    a("v_lshrrev_b32 v18, 2, v16")
    a("v_and_b32 v19, 3, v16")
    a("v_lshl_add_u32 v18, v18, 3, v19")
    a("v_mov_b32 v20, 0x7ffffff0")
    a("v_cmp_gt_u32 s[40:41], 8, v16")
    a("v_cmp_gt_u32 s[42:43], 2, v17")
    a("v_lshlrev_b32 v3, 8, v16")
    a("v_lshl_add_u32 v3, v17, 4, v3")
    a("v_lshlrev_b32 v4, 13, v16")
    a("v_lshl_add_u32 v4, v17, 4, v4")
    a("v_cndmask_b32 v4, v20, v4, s[40:41]")
    a("v_lshlrev_b32 v5, 8, v18")
    a("v_lshl_add_u32 v5, v17, 4, v5")
    a("v_lshlrev_b32 v6, 6, v18")
    a("v_lshl_add_u32 v6, v17, 4, v6")
    a("v_lshlrev_b32 v7, 4, v18")
    a("v_lshl_add_u32 v7, v17, 3, v7")
    a("v_cndmask_b32 v7, v20, v7, s[42:43]")
    a("s_lshl_b32 s34, s30, 5")
    a("s_add_u32 s34, s34, s28")
    a("s_lshl_b32 s34, s34, 13")
    a("s_lshl_b32 s35, s33, 12")
    a("s_add_u32 s35, s35, s34")
    a(f"s_add_u32 s44, s35, 0x{Q_OFF:x}")
    a(f"s_add_u32 s45, s35, 0x{O_OFF:x}")
    a(f"s_add_u32 s46, s34, 0x{K_OFF:x}")
    a(f"s_add_u32 s47, s34, 0x{VT_OFF:x}")
    a("s_lshl_b32 s35, s30, 16")
    a("s_lshl_b32 s36, s28, 8")
    a("s_add_u32 s36, s36, s35")
    a(f"s_add_u32 s36, s36, 0x{KM_OFF:x}")
    a("s_lshl_b32 s37, s28, 11")
    a("s_add_u32 s37, s37, s35")
    a(f"s_add_u32 s37, s37, 0x{VMT_OFF:x}")
    a("s_lshl_b32 s38, s28, 6")
    a("s_add_u32 s38, s38, s30")
    a("s_lshl_b32 s38, s38, 2")
    a(f"s_add_u32 s39, s38, 0x{CF_OFF:x}")
    a(f"s_add_u32 s38, s38, 0x{PF_OFF:x}")
    a("s_mov_b32 s54, 0x3db504f3")
    a("s_mov_b32 s55, 0x3fb8aa3b")
    a("s_mov_b32 s56, 0xff800000")
    a("s_mov_b32 s57, 0x01010101")
    poll_eq(a, [38], ["s57"])
    for c in range(4):
        a(f"buffer_load_dwordx4 {v4(64+4*c)}, v3, s[24:27], s44 offen offset:{c*64} sc1")
    for Tx in range(2):
        for c in range(4):
            a(f"buffer_load_dwordx4 {v4(112+(Tx*4+c)*4)}, v5, s[24:27], s46 offen offset:{Tx*1024+c*64} sc1")
    for T in range(8):
        e0 = 32*(T >> 1) + 4*(T & 1)
        a(f"s_add_u32 s48, s47, {e0*64}")
        a(f"buffer_load_dwordx4 {v4(144+4*T)}, v6, s[24:27], s48 offen sc1")
    a("s_waitcnt vmcnt(8)")
    for Tk in range(1, 3):
        acc = 192 + Tk*4
        for c in range(4):
            A = 112 + ((Tk-1)*4+c)*4
            z = "0" if c == 0 else v4(acc)
            a(f"v_mfma_f32_16x16x32_bf16 {v4(acc)}, {v4(A)}, {v4(64+4*c)}, {z}")
    poll_eq(a, [39], ["s57"])
    for c in range(4):
        a(f"buffer_load_dwordx4 {v4(96+4*c)}, v4, s[24:27], s36 offen offset:{c*64} sc1")
    for T in range(8):
        e0 = 32*(T >> 1) + 4*(T & 1)
        a(f"buffer_load_dwordx2 v[{176+2*T}:{177+2*T}], v7, s[24:27], s37 offen offset:{e0*16} sc1")
    a("s_waitcnt vmcnt(8)")
    for c in range(4):
        z = "0" if c == 0 else v4(192)
        a(f"v_mfma_f32_16x16x32_bf16 {v4(192)}, {v4(96+4*c)}, {v4(64+4*c)}, {z}")
    a("v_lshlrev_b32 v21, 3, v17")
    a("v_sub_u32 v21, v16, v21")
    a("s_lshl_b32 s48, s33, 4")
    a("v_add_u32 v21, s48, v21")
    a("v_mov_b32 v100, s56")
    a("s_nop 7")
    b = 192
    for i in range(0, 12, 2):
        a(f"v_cvt_pk_bf16_f32 v22, v{b+i}, v{b+1+i}")
        a(f"v_lshlrev_b32 v{b+i}, 16, v22")
        a(f"v_and_b32 v{b+1+i}, 0xffff0000, v22")
        a(f"v_mul_f32 v{b+i}, s54, v{b+i}")
        a(f"v_mul_f32 v{b+1+i}, s54, v{b+1+i}")
        a(f"v_cvt_pk_bf16_f32 v22, v{b+i}, v{b+1+i}")
        a(f"v_lshlrev_b32 v{b+i}, 16, v22")
        a(f"v_and_b32 v{b+1+i}, 0xffff0000, v22")
    for i in range(4):
        a(f"v_cndmask_b32 v{b+i}, v100, v{b+i}, s[42:43]")
    for Tx in range(2):
        for r in range(4):
            a(f"v_cmp_le_i32 vcc, {4*Tx + r}, v21")
            a("s_nop 1")
            a(f"v_cndmask_b32 v{b+4+4*Tx+r}, v100, v{b+4+4*Tx+r}, vcc")
    a(f"v_max3_f32 v22, v{b}, v{b+1}, v{b+2}")
    for i in range(3, 11, 2):
        a(f"v_max3_f32 v22, v22, v{b+i}, v{b+i+1}")
    a(f"v_max_f32 v22, v22, v{b+11}")
    xrow_reduce(a, "v22", "v23", "v_max_f32")
    a("v_mul_f32 v22, s55, v22")
    for i in range(12):
        a(f"v_fma_f32 v{b+i}, v{b+i}, s55, -v22")
    for i in range(12):
        a(f"v_exp_f32 v{b+i}, v{b+i}")
    a("s_nop 0")
    a(f"v_add_f32 v22, v{b}, v{b+1}")
    for i in range(2, 12):
        a(f"v_add_f32 v22, v22, v{b+i}")
    xrow_reduce(a, "v22", "v23", "v_add_f32")
    a("v_rcp_f32 v22, v22")
    a("s_nop 0")
    for i in range(12):
        a(f"v_mul_f32 v{b+i}, v{b+i}, v22")
    for i in range(6):
        a(f"v_cvt_pk_bf16_f32 v{216+i}, v{b+2*i}, v{b+2*i+1}")
    a("s_waitcnt vmcnt(0)")
    a("s_nop 1")
    for T in range(8):
        acc = 64 + T*4
        a(f"v_mfma_f32_16x16x32_bf16 {v4(acc)}, {v4(144+4*T)}, v[218:221], 0")
    for T in range(8):
        acc = 64 + T*4
        a(f"v_mfma_f32_16x16x16_bf16 {v4(acc)}, v[{176+2*T}:{177+2*T}], v[216:217], {v4(acc)}")
    a("s_nop 7")
    for c in range(4):
        A0 = 64 + (2*c)*4; A1 = A0 + 4
        d = 192 + c*4
        a(f"v_cvt_pk_bf16_f32 v{d}, v{A0}, v{A0+1}")
        a(f"v_cvt_pk_bf16_f32 v{d+1}, v{A0+2}, v{A0+3}")
        a(f"v_cvt_pk_bf16_f32 v{d+2}, v{A1}, v{A1+1}")
        a(f"v_cvt_pk_bf16_f32 v{d+3}, v{A1+2}, v{A1+3}")
        a(f"buffer_store_dwordx4 {v4(d)}, v3, s[24:27], s45 offen offset:{c*64} sc1")
    a("s_lshl_b32 s48, s30, 6")
    a(f"s_add_u32 s48, s48, 0x{CNT_OFF:x}")
    cnt_add(a, 48)
    a("s_branch W_LOOP")

def gen_G(a):
    a.label("W_G")
    a("s_and_b32 s33, s32, 1")
    a("s_lshr_b32 s32, s32, 1")
    a("v_and_b32 v16, 15, v1")
    a("v_lshrrev_b32 v17, 4, v1")
    a("v_lshlrev_b32 v3, 4, v1")
    a(f"s_mov_b32 s39, 0x{CNT_OFF+0x1040:x}")
    poll_eq(a, [39], [f"{N_F2}"])
    poll_dbg(a, [D_PKO], ["128"])
    a("s_lshl_b32 s41, s30, 5")
    a("s_lshl_b32 s42, s33, 4")
    a("s_add_u32 s41, s41, s42")
    a("v_add_u32 v5, s41, v16")
    a(f"s_mov_b32 s43, 0x{IDX_OFF:x}")
    a("buffer_load_dwordx4 v[64:67], off, s[24:27], s43 sc1")
    a("buffer_load_dwordx4 v[68:71], off, s[24:27], s43 offset:16 sc1")
    a("v_lshlrev_b32 v8, 4, v17")
    a("v_lshl_add_u32 v9, v5, 10, v8")
    a("s_lshl_b32 s42, s32, 6")
    a("buffer_load_dwordx4 v[48:51], v9, s[16:19], s42 offen")
    a("buffer_load_dwordx4 v[52:55], v9, s[24:27], s42 offen sc1")
    a("v_mov_b32 v10, 0x7ffffff0")
    a("s_waitcnt vmcnt(2)")
    for q in range(8):
        a(f"v_cmp_eq_u32 vcc, v{64+q}, v5")
        a(f"v_mov_b32 v7, {q*1024}")
        a("s_nop 0")
        a("v_cndmask_b32 v10, v10, v7, vcc")
    a("v_add_u32 v10, v10, v8")
    a(f"s_add_u32 s43, s42, 0x{UPD_OFF:x}")
    a("buffer_load_dwordx4 v[56:59], v10, s[24:27], s43 offen sc1")
    a("s_lshl_b32 s34, s32, 8")
    a("s_lshl_b32 s35, s29, 5")
    a("s_add_u32 s34, s34, s35")
    a("s_lshl_b32 s34, s34, 10")
    a(f"s_add_u32 s34, s34, 0x{WOP:x}")
    for T in range(2):
        a(f"s_add_u32 s35, s34, {T*0x20000}")
        for cc in range(32):
            r = (T*32+cc)*4
            a(f"buffer_load_dwordx4 a[{r}:{r+3}], v3, s[24:27], s35 offen offset:{(cc%4)*1024} sc1")
            if cc % 4 == 3:
                a("s_add_u32 s35, s35, 4096")
    a("v_lshlrev_b32 v4, 8, v16")
    a("v_lshl_add_u32 v4, v17, 4, v4")
    a("s_lshl_b32 s36, s30, 5")
    a("s_lshl_b32 s37, s29, 3")
    a("s_add_u32 s36, s36, s37")
    a("s_lshl_b32 s36, s36, 13")
    a("s_lshl_b32 s37, s33, 12")
    a("s_add_u32 s36, s36, s37")
    a(f"s_add_u32 s36, s36, 0x{O_OFF:x}")
    a("s_lshl_b32 s38, s30, 6")
    a(f"s_add_u32 s38, s38, 0x{CNT_OFF:x}")
    poll_eq(a, [38], ["16"])
    vm = VM(a)
    def breg(hd, c4): return 64 + (hd*4 + c4)*4
    for hd in range(8):
        for c4 in range(4):
            vm.op(f"buffer_load_dwordx4 {v4(breg(hd,c4))}, v4, s[24:27], s36 offen offset:{c4*64} sc1", (hd, c4))
        a("s_add_u32 s36, s36, 8192")
    for hd in range(8):
        for c4 in range(4):
            cc = hd*4 + c4
            vm.need((hd, c4))
            for T in range(2):
                acc = 32 + T*4
                z = "0" if cc == 0 else v4(acc)
                r = (T*32+cc)*4
                a(f"v_mfma_f32_16x16x32_bf16 {v4(acc)}, a[{r}:{r+3}], {v4(breg(hd,c4))}, {z}")
    a("s_nop 7")
    a("v_lshl_add_u32 v6, v2, 11, v3")
    a(f"v_add_u32 v6, {LDS_RED}, v6")
    for t in range(2):
        a(f"ds_write_b128 v6, {v4(32+4*t)} offset:{t*1024}")
    a("s_waitcnt lgkmcnt(0)")
    a("s_barrier")
    a("s_cmp_ge_u32 s29, 1")
    a("s_cbranch_scc1 W_LOOP")
    a(f"v_add_u32 v6, {LDS_RED}, v3")
    for T in range(2):
        for w in range(4):
            a(f"ds_read_b128 {v4(96+(T*4+w)*4)}, v6 offset:{w*2048+T*1024}")
    a("s_waitcnt lgkmcnt(0)")
    for T in range(2):
        for r in range(4):
            b = 96 + T*16 + r
            a(f"v_add_f32 v{b}, v{b}, v{b+4}")
            a(f"v_add_f32 v{b+8}, v{b+8}, v{b+12}")
        for r in range(4):
            b = 96 + T*16 + r
            a(f"v_add_f32 v{b}, v{b}, v{b+8}")
    for T in range(2):
        b = 96 + T*16
        a(f"v_cvt_pk_bf16_f32 v{84+2*T}, v{b}, v{b+1}")
        a(f"v_cvt_pk_bf16_f32 v{85+2*T}, v{b+2}, v{b+3}")
    for w in range(4):
        a(f"v_lshlrev_b32 v40, 16, v{84+w}")
        a(f"v_and_b32 v41, 0xffff0000, v{84+w}")
        a(f"v_lshlrev_b32 v42, 16, v{48+w}")
        a(f"v_and_b32 v43, 0xffff0000, v{48+w}")
        a("v_add_f32 v40, v42, v40")
        a("v_add_f32 v41, v43, v41")
        a("v_cvt_pk_bf16_f32 v44, v40, v41")
        a(f"v_lshlrev_b32 v40, 16, v{52+w}")
        a(f"v_and_b32 v41, 0xffff0000, v{52+w}")
        a(f"v_lshlrev_b32 v42, 16, v{56+w}")
        a(f"v_and_b32 v43, 0xffff0000, v{56+w}")
        a("v_add_f32 v40, v40, v42")
        a("v_add_f32 v41, v41, v43")
        a("v_cvt_pk_bf16_f32 v45, v40, v41")
        a("v_lshlrev_b32 v40, 16, v44")
        a("v_and_b32 v41, 0xffff0000, v44")
        a("v_lshlrev_b32 v42, 16, v45")
        a("v_and_b32 v43, 0xffff0000, v45")
        a("v_add_f32 v40, v40, v42")
        a("v_add_f32 v41, v41, v43")
        a(f"v_cvt_pk_bf16_f32 v{88+w}, v40, v41")
    a("buffer_store_dwordx4 v[88:91], v9, s[20:23], s42 offen")
    a("s_branch W_LOOP")

def gen_F1(a):
    a.label("W_F1")
    a("v_lshlrev_b32 v3, 4, v1")
    a("s_lshl_b32 s30, s30, 2")
    a("s_add_u32 s30, s30, s29")
    a("v_lshlrev_b32 v4, 7, v1")
    poll_dbg(a, [D_LN, D_LN+4, D_LN+8, D_LN+12, D_PKG], ["0x08080808"]*4 + ["112"])
    a(f"s_mov_b32 s31, 0x{R_OFF:x}")
    for i in range(8):
        a(f"buffer_load_dwordx4 {v4(64+4*i)}, v4, s[24:27], s31 offen offset:{16*i} sc1")
    a("s_waitcnt vmcnt(0)")
    a("v_lshlrev_b32 v5, 5, v1")
    a("v_sub_u32 v5, 2047, v5")
    for i in range(32):
        r = 64 + i
        a(f"v_ashrrev_i32 v6, 31, v{r}")
        a(f"v_or_b32 v6, 0x80000000, v6")
        a(f"v_xor_b32 v{r}, v{r}, v6")
        a(f"v_and_b32 v{r}, 0xffff0000, v{r}")
        a(f"v_subrev_u32 v6, {i}, v5")
        a(f"v_or_b32 v{r}, v{r}, v6")
    a("v_mov_b32 v10, -1")
    for j in range(8):
        a("v_mov_b32 v8, 0")
        for i in range(32):
            a(f"v_cmp_lt_u32 vcc, v{64+i}, v10")
            a("s_nop 1")
            a(f"v_cndmask_b32 v6, 0, v{64+i}, vcc")
            a("v_max_u32 v8, v8, v6")
        wave_sum(a, "v8", "v9", "v_max_u32")
        a("v_mov_b32 v10, v8")
        a("s_nop 0")
        a(f"v_readfirstlane_b32 s{40+j}, v8")
    for j in range(8):
        a(f"s_and_b32 s{40+j}, s{40+j}, 0x7ff")
        a(f"s_sub_u32 s{40+j}, 2047, s{40+j}")
    a("v_and_b32 v16, 15, v1")
    a("v_lshrrev_b32 v17, 4, v1")
    a("v_and_b32 v18, 7, v16")
    a("v_mov_b32 v11, s40")
    for j in range(1, 8):
        a(f"v_cmp_eq_u32 vcc, {j}, v18")
        a(f"v_mov_b32 v12, s{40+j}")
        a("s_nop 0")
        a("v_cndmask_b32 v11, v11, v12, vcc")
    a("s_cmp_lg_u32 s30, 0")
    a("s_cbranch_scc1 W_F1A")
    a("v_lshlrev_b32 v12, 2, v11")
    a("buffer_load_dword v13, v12, s[24:27], s31 offen sc1")
    a("v_lshlrev_b32 v12, 2, v18")
    a(f"s_mov_b32 s32, 0x{IDX_OFF:x}")
    a("buffer_store_dword v11, v12, s[24:27], s32 offen sc1")
    a("s_waitcnt vmcnt(0)")
    a("buffer_store_dword v13, v12, s[24:27], s32 offen offset:32 sc1")
    a.label("W_F1A")
    a("v_lshlrev_b32 v12, 10, v11")
    a("v_lshl_add_u32 v12, v17, 4, v12")
    for c in range(16):
        a(f"buffer_load_dwordx4 {v4(64+4*c)}, v12, s[24:27], 0 offen offset:{c*64} sc1")
    a("s_lshl_b32 s32, s30, 15")
    a(f"s_add_u32 s33, s32, 0x{WGP:x}")
    a(f"s_add_u32 s34, s32, 0x{WUP:x}")
    for m, sb in enumerate((33, 34)):
        for i in range(32):
            r = m*128 + i*4
            a(f"buffer_load_dwordx4 a[{r}:{r+3}], v3, s[24:27], s{sb} offen offset:{(i%4)*1024} sc1")
            if i % 4 == 3:
                a(f"s_add_u32 s{sb}, s{sb}, 4096")
    a("s_waitcnt vmcnt(0)")
    for c in range(16):
        for m in range(2):
            for T in range(2):
                acc = 40 + (m*2+T)*4
                r = m*128 + (T*16+c)*4
                z = "0" if c == 0 else v4(acc)
                a(f"v_mfma_f32_16x16x32_bf16 {v4(acc)}, a[{r}:{r+3}], {v4(64+4*c)}, {z}")
    a("s_nop 7")
    a("s_mov_b32 s35, 0xbfb8aa3b")
    for i in range(0, 8, 2):
        a(f"v_cvt_pk_bf16_f32 v4, v{40+i}, v{41+i}")
        a("v_lshlrev_b32 v5, 16, v4")
        a("v_and_b32 v6, 0xffff0000, v4")
        for g in ("v5", "v6"):
            a(f"v_mul_f32 v7, s35, {g}")
            a("v_exp_f32 v7, v7")
            a("s_nop 0")
            a("v_add_f32 v7, 1.0, v7")
            a("v_rcp_f32 v7, v7")
            a("s_nop 0")
            a(f"v_mul_f32 {g}, {g}, v7")
        a("v_cvt_pk_bf16_f32 v4, v5, v6")
        a("v_lshlrev_b32 v5, 16, v4")
        a("v_and_b32 v6, 0xffff0000, v4")
        a(f"v_cvt_pk_bf16_f32 v4, v{48+i}, v{49+i}")
        a("v_lshlrev_b32 v7, 16, v4")
        a("v_and_b32 v8, 0xffff0000, v4")
        a("v_mul_f32 v5, v5, v7")
        a("v_mul_f32 v6, v6, v8")
        a(f"v_cvt_pk_bf16_f32 v{56+i//2}, v5, v6")
    a("s_movk_i32 s35, 3584")
    a("v_mul_lo_u32 v4, v16, s35")
    a("v_lshl_add_u32 v4, v17, 4, v4")
    a("v_mov_b32 v5, 0x7ffffff0")
    a("v_cmp_gt_u32 vcc, 8, v16")
    a("s_nop 1")
    a("v_cndmask_b32 v4, v5, v4, vcc")
    a("s_lshl_b32 s36, s30, 6")
    a(f"s_add_u32 s36, s36, 0x{H_OFF:x}")
    a("buffer_store_dwordx4 v[56:59], v4, s[24:27], s36 offen sc1")
    a(f"s_mov_b32 s36, 0x{CNT_OFF+0x1000:x}")
    cnt_add(a, 36)
    a("s_branch W_LOOP")

def gen_F2(a):
    a.label("W_F2")
    a("v_and_b32 v16, 15, v1")
    a("v_lshrrev_b32 v17, 4, v1")
    a("v_mov_b32 v20, 0x7ffffff0")
    a("v_cmp_gt_u32 s[40:41], 8, v16")
    a("s_lshl_b32 s30, s30, 2")
    a("s_add_u32 s30, s30, s29")
    a("v_and_b32 v3, 7, v16")
    a("s_movk_i32 s31, 3584")
    a("v_mul_lo_u32 v3, v3, s31")
    a("v_lshl_add_u32 v3, v17, 4, v3")
    a("v_lshlrev_b32 v4, 4, v1")
    a("s_mul_i32 s32, s30, 114688")
    a(f"s_add_u32 s32, s32, 0x{WDP:x}")
    a("s_add_u32 s33, s32, 57344")
    a(f"s_mov_b32 s34, 0x{H_OFF:x}")
    a(f"s_mov_b32 s36, 0x{CNT_OFF+0x1000:x}")
    poll_eq(a, [36], [f"{N_F1}"])
    poll_dbg(a, [D_PKD], ["56"])
    for T in range(2):
        for r in range(4):
            a(f"v_mov_b32 v{40+4*T+r}, 0")
    a("s_mov_b32 s35, 0")
    a.label("W_F2L")
    for u in range(4):
        a(f"buffer_load_dwordx4 {v4(64+12*u)}, v3, s[24:27], s34 offen offset:{u*64} sc1")
        a(f"buffer_load_dwordx4 {v4(68+12*u)}, v4, s[24:27], s32 offen offset:{u*1024} sc1")
        a(f"buffer_load_dwordx4 {v4(72+12*u)}, v4, s[24:27], s33 offen offset:{u*1024} sc1")
    for u in range(4):
        a(f"s_waitcnt vmcnt({9-3*u})")
        a(f"v_mfma_f32_16x16x32_bf16 v[40:43], {v4(68+12*u)}, {v4(64+12*u)}, v[40:43]")
        a(f"v_mfma_f32_16x16x32_bf16 v[44:47], {v4(72+12*u)}, {v4(64+12*u)}, v[44:47]")
    a("s_add_u32 s34, s34, 256")
    a("s_add_u32 s32, s32, 4096")
    a("s_add_u32 s33, s33, 4096")
    a("s_add_u32 s35, s35, 1")
    a("s_cmp_lt_u32 s35, 14")
    a("s_cbranch_scc1 W_F2L")
    a("v_and_b32 v5, 7, v16")
    a("v_lshlrev_b32 v5, 2, v5")
    a(f"s_mov_b32 s36, 0x{IDX_OFF+32:x}")
    a("buffer_load_dword v6, v5, s[24:27], s36 offen sc1")
    a("s_mov_b32 s55, 0xbfb8aa3b")
    a("s_waitcnt vmcnt(0)")
    a("v_mul_f32 v6, s55, v6")
    a("v_exp_f32 v6, v6")
    a("s_nop 0")
    a("v_add_f32 v6, 1.0, v6")
    a("v_rcp_f32 v6, v6")
    a("s_nop 0")
    a("v_cvt_pk_bf16_f32 v6, v6, v6")
    a("v_lshlrev_b32 v6, 16, v6")
    for i in range(0, 8, 2):
        a(f"v_cvt_pk_bf16_f32 v7, v{40+i}, v{41+i}")
        a(f"v_lshlrev_b32 v8, 16, v7")
        a(f"v_and_b32 v9, 0xffff0000, v7")
        a("v_mul_f32 v8, v8, v6")
        a("v_mul_f32 v9, v9, v6")
        a(f"v_cvt_pk_bf16_f32 v{48+i//2}, v8, v9")
    a("v_lshlrev_b32 v5, 10, v16")
    a("v_lshl_add_u32 v5, v17, 4, v5")
    a("v_cndmask_b32 v5, v20, v5, s[40:41]")
    a("s_lshl_b32 s36, s30, 6")
    a(f"s_add_u32 s36, s36, 0x{UPD_OFF:x}")
    a("buffer_store_dwordx4 v[48:51], v5, s[24:27], s36 offen sc1")
    a(f"s_mov_b32 s36, 0x{CNT_OFF+0x1040:x}")
    cnt_add(a, 36)
    a("s_branch W_LOOP")

def gen_INIT(a):
    a.label("W_INIT")
    a("s_mov_b32 s38, -1")
    a(f"s_mov_b32 s39, 0x{FILL_BEG:x}")
    a("s_cmp_lt_u32 s30, 56")
    a("s_cbranch_scc1 W_INIT2")
    a("s_sub_u32 s30, s30, 56")
    a("s_mov_b32 s38, 0")
    a(f"s_mov_b32 s39, 0x{ZERO_BEG:x}")
    a.label("W_INIT2")
    a("s_lshl_b32 s36, s30, 15")
    a("s_add_u32 s36, s36, s39")
    a("v_lshlrev_b32 v3, 4, v0")
    for j in range(4):
        a(f"v_mov_b32 v{4+j}, s38")
    for p in range(8):
        a(f"s_add_u32 s37, s36, {4096*p}")
        a("buffer_store_dwordx4 v[4:7], v3, s[24:27], s37 offen sc1")
    dbg_add(a, D_INIT, "1")
    a("s_branch W_LOOP")

def gen_LN(a):
    a.label("W_LN")
    a("s_load_dwordx2 s[40:41], s[0:1], 64")
    a("s_lshl_b32 s36, s30, 4")
    a("v_lshlrev_b32 v3, 4, v1")
    a("v_lshl_add_u32 v4, v2, 12, v3")
    a("s_lshl_b32 s37, s36, 10")
    for i in range(4):
        a(f"buffer_load_dwordx4 v[{12+4*i}:{15+4*i}], v4, s[16:19], s37 offen offset:{1024*i}")
    a("s_waitcnt lgkmcnt(0)")
    srd(a, 32, 40, 1024)
    a("buffer_load_dwordx4 v[8:11], v3, s[32:35], 0 offen")
    a("s_waitcnt vmcnt(0)")
    for j in range(4):
        a(f"v_lshlrev_b32 v{40+2*j}, 16, v{8+j}")
        a(f"v_and_b32 v{41+2*j}, 0xffff0000, v{8+j}")
    a("s_mov_b32 s38, 0x3b000000")
    a("s_mov_b32 s39, 0x3727c5ac")
    for i in range(4):
        b = 12 + 4*i
        for j in range(4):
            a(f"v_lshlrev_b32 v{48+2*j}, 16, v{b+j}")
            a(f"v_and_b32 v{49+2*j}, 0xffff0000, v{b+j}")
        a("v_add_f32 v56, v48, v49")
        for j in range(2, 8):
            a(f"v_add_f32 v56, v56, v{48+j}")
        wave_sum(a, "v56", "v57")
        a("v_mul_f32 v56, s38, v56")
        a("v_sub_f32 v58, v48, v56")
        a("v_mul_f32 v59, v58, v58")
        for j in range(1, 8):
            a(f"v_sub_f32 v58, v{48+j}, v56")
            a(f"v_fmac_f32 v59, v58, v58")
        wave_sum(a, "v59", "v57")
        a("v_mul_f32 v59, s38, v59")
        a("v_cvt_pk_bf16_f32 v58, v56, v59")
        a("v_lshlrev_b32 v56, 16, v58")
        a("v_and_b32 v59, 0xffff0000, v58")
        a("v_add_f32 v59, s39, v59")
        a("v_cvt_pk_bf16_f32 v59, v59, v59")
        a("v_lshlrev_b32 v59, 16, v59")
        a("v_sqrt_f32 v59, v59")
        a("s_nop 0")
        a("v_cvt_pk_bf16_f32 v59, v59, v59")
        a("v_lshlrev_b32 v59, 16, v59")
        a("v_rcp_f32 v58, v59")
        a("s_nop 0")
        for j in range(0, 8, 2):
            a(f"v_sub_f32 v60, v{48+j}, v56")
            a(f"v_sub_f32 v61, v{49+j}, v56")
            a("v_cvt_pk_bf16_f32 v60, v60, v61")
            a("v_and_b32 v61, 0xffff0000, v60")
            a("v_lshlrev_b32 v60, 16, v60")
            a("v_mul_f32 v62, v60, v58")
            a("v_mul_f32 v63, v61, v58")
            a("v_fma_f32 v60, -v62, v59, v60")
            a("v_fma_f32 v61, -v63, v59, v61")
            a("v_fma_f32 v62, v60, v58, v62")
            a("v_fma_f32 v63, v61, v58, v63")
            a(f"v_cvt_pk_bf16_f32 v{64+4*i+j//2}, v62, v63")
        a("v_mov_b32 v60, 0")
        for j in range(4):
            a(f"v_lshlrev_b32 v61, 16, v{64+4*i+j}")
            a(f"v_and_b32 v62, 0xffff0000, v{64+4*i+j}")
            a(f"v_fmac_f32 v60, v61, v{40+2*j}")
            a(f"v_fmac_f32 v60, v62, v{41+2*j}")
        a(f"buffer_store_dwordx4 v[{64+4*i}:{67+4*i}], v4, s[24:27], s37 offen offset:{1024*i} sc1")
        wave_sum(a, "v60", "v57")
        a("v_cvt_pk_bf16_f32 v60, v60, v60")
        a(f"v_lshlrev_b32 v{80+i}, 16, v60")
    a("v_lshlrev_b32 v61, 4, v2")
    a("s_lshl_b32 s40, s36, 2")
    a(f"s_add_u32 s40, s40, 0x{R_OFF:x}")
    a("s_mov_b64 exec, 1")
    a("buffer_store_dwordx4 v[80:83], v61, s[24:27], s40 offen sc1")
    a("s_mov_b64 exec, -1")
    a("s_lshr_b32 s41, s30, 3")
    a("s_and_b32 s42, s41, 3")
    a("s_lshl_b32 s42, s42, 3")
    a("s_lshl_b32 s42, 1, s42")
    a("s_lshr_b32 s41, s41, 2")
    a("s_lshl_b32 s41, s41, 2")
    dbg_add(a, D_LN, "s42", "s41")
    a("s_branch W_LOOP")

def gen_PK(a):
    a.label("W_PK")
    a("s_cmp_ge_u32 s30, 128")
    a("s_cbranch_scc1 W_PK2")
    a("s_lshr_b32 s33, s30, 1")
    a("s_and_b32 s34, s30, 1")
    a("s_mov_b32 s46, 1024")
    a("s_mov_b32 s32, 128")
    a("s_mov_b32 s35, 0x400000")
    a(f"s_mov_b32 s31, 0x{WOP:x}")
    a("s_mov_b32 s38, 40")
    a(f"s_mov_b32 s47, {D_PKO}")
    a("s_branch W_PKGO")
    a.label("W_PK2")
    a("s_cmp_ge_u32 s30, 240")
    a("s_cbranch_scc1 W_PK3")
    a("s_sub_u32 s39, s30, 128")
    a(f"s_mov_b32 s31, 0x{WGP:x}")
    a("s_mov_b32 s38, 72")
    a("s_cmp_lt_u32 s39, 56")
    a("s_cbranch_scc1 W_PK2b")
    a("s_sub_u32 s39, s39, 56")
    a(f"s_mov_b32 s31, 0x{WUP:x}")
    a("s_mov_b32 s38, 80")
    a.label("W_PK2b")
    a("s_mul_i32 s33, s39, 37")
    a("s_lshr_b32 s33, s33, 8")
    a("s_mul_i32 s34, s33, 7")
    a("s_sub_u32 s34, s39, s34")
    a("s_mov_b32 s46, 3584")
    a("s_mov_b32 s32, 16")
    a(f"s_mov_b32 s35, 0x{512*1792*2:x}")
    a(f"s_mov_b32 s47, {D_PKG}")
    a("s_branch W_PKGO")
    a.label("W_PK3")
    a("s_sub_u32 s39, s30, 240")
    a("s_lshr_b32 s33, s39, 1")
    a("s_and_b32 s34, s39, 1")
    a("s_mov_b32 s46, 1024")
    a("s_mov_b32 s32, 56")
    a(f"s_mov_b32 s35, 0x{512*1792*2:x}")
    a(f"s_mov_b32 s31, 0x{WDP:x}")
    a("s_mov_b32 s38, 88")
    a(f"s_mov_b32 s47, {D_PKD}")
    a.label("W_PKGO")
    a("s_load_dwordx2 s[36:37], s[0:1], s38")
    a("s_waitcnt lgkmcnt(0)")
    a("s_mov_b32 s40, s36")
    a("s_and_b32 s41, s37, 0xffff")
    a("s_mov_b32 s42, s35")
    a("s_mov_b32 s43, 0x00020000")
    a("s_lshl_b32 s44, s33, 6")
    a("s_mul_i32 s44, s44, s46")
    a("s_lshl_b32 s45, s34, 9")
    a("s_add_u32 s44, s44, s45")
    a("s_lshl_b32 s45, s46, 3")
    a("v_lshrrev_b32 v3, 5, v0")
    a("v_and_b32 v4, 31, v0")
    a("v_lshlrev_b32 v4, 4, v4")
    a("v_mul_lo_u32 v5, v3, s46")
    a("v_add_u32 v5, v5, v4")
    a("s_movk_i32 s48, 528")
    a("v_mul_lo_u32 v6, v3, s48")
    a("v_add_u32 v6, v6, v4")
    a(f"v_add_u32 v6, {LDS_TOK}, v6")
    for p in range(8):
        a(f"buffer_load_dwordx4 v[{64+4*p}:{67+4*p}], v5, s[40:43], s44 offen")
        if p < 7:
            a("s_add_u32 s44, s44, s45")
    for p in range(8):
        a(f"s_waitcnt vmcnt({7-p})")
        a(f"ds_write_b128 v6, v[{64+4*p}:{67+4*p}] offset:{p*8*528}")
    a("s_waitcnt lgkmcnt(0)")
    a("s_barrier")
    a("v_lshrrev_b32 v7, 4, v1")
    a("v_bfe_u32 v3, v1, 2, 2")
    a("v_lshl_add_u32 v3, v7, 3, v3")
    a("v_mul_lo_u32 v3, v3, s48")
    a("v_and_b32 v4, 3, v1")
    a("v_lshl_add_u32 v3, v4, 4, v3")
    a("v_lshl_add_u32 v3, v2, 7, v3")
    a(f"v_add_u32 v3, {LDS_TOK}, v3")
    a("s_lshl_b32 s49, s32, 12")
    a("v_mul_lo_u32 v4, v2, s49")
    a("v_lshl_add_u32 v4, v1, 4, v4")
    a("s_lshl_b32 s50, s34, 4")
    a("s_mul_i32 s50, s50, s32")
    a("s_lshl_b32 s51, s33, 1")
    a("s_add_u32 s50, s50, s51")
    a("s_lshl_b32 s50, s50, 10")
    a("s_add_u32 s50, s50, s31")
    a("s_lshl_b32 s52, s32, 10")
    idx = 0
    for pp in range(2):
        for tt in range(2):
            for cc in range(2):
                r = 64 + 4*idx
                for half in range(2):
                    off = cc*32*528 + half*4*528 + pp*64 + tt*8
                    a(f"ds_read_b64_tr_b16 v[{r+2*half}:{r+2*half+1}], v3 offset:{off}")
                idx += 1
    idx = 0
    for pp in range(2):
        for tt in range(2):
            a(f"s_mul_i32 s51, s52, {2*pp+tt}")
            a("s_add_u32 s51, s51, s50")
            a("s_add_u32 s53, s51, 1024")
            for cc in range(2):
                r = 64 + 4*idx
                a(f"s_waitcnt lgkmcnt({2*(7-idx)})")
                a(f"buffer_store_dwordx4 v[{r}:{r+3}], v4, s[24:27], s{51 if cc==0 else 53} offen sc1")
                idx += 1
    dbg_add(a, 0, "1", "s47")
    a("s_branch W_LOOP")

def gen_workers(a):
    a.label("WORKER")
    a("s_load_dwordx2 s[6:7], s[0:1], 112")
    a("s_load_dwordx2 s[4:5], s[0:1], 0")
    a("s_load_dwordx2 s[8:9], s[0:1], 96")
    a("v_lshrrev_b32 v2, 6, v0")
    a("v_and_b32 v1, 63, v0")
    a(f"v_mov_b32 v30, {LDS_SLOT}")
    a("s_waitcnt lgkmcnt(0)")
    srd(a, 24, 6, WS_SIZE)
    srd(a, 16, 4, 2048*1024)
    srd(a, 20, 8, 2048*1024)
    a("s_mov_b32 s73, -1")
    a("s_mov_b32 s78, 0")
    if STAMP:
        a("s_mov_b32 s75, -1")
    a.label("W_LOOP")
    if STAMP:
        a("s_cmp_eq_u32 s75, -1")
        a("s_cbranch_scc1 W_ST1")
        a("s_cmp_lg_u32 s29, 0")
        a("s_cbranch_scc1 W_ST1")
        a("s_memrealtime s[76:77]")
        a("s_waitcnt lgkmcnt(0)")
        a("v_mov_b32 v28, s76")
        a("s_lshl_b32 s76, s75, 3")
        a("s_add_u32 s76, s76, 0x9000004")
        a("buffer_store_dword v28, off, s[24:27], s76")
        a.label("W_ST1")
    a("s_barrier")
    a("s_cmp_lg_u32 s29, 0")
    a("s_cbranch_scc1 W_L2")
    a("s_mov_b64 exec, 1")
    a.label("W_Q0")
    a("s_cmp_eq_u32 s73, -1")
    a("s_cbranch_scc0 W_Q0R")
    a("v_mov_b32 v28, 1")
    a("buffer_atomic_add v28, off, s[12:15], 0 offset:196 sc0 sc1")
    a("s_waitcnt vmcnt(0)")
    a("v_readfirstlane_b32 s31, v28")
    a(f"s_cmp_lt_u32 s31, {N_U0}")
    a("s_cbranch_scc0 W_Q0b")
    a("s_add_u32 s32, s31, 0x20000")
    a("v_mov_b32 v28, s32")
    a("s_branch W_QW")
    a.label("W_Q0b")
    a(f"s_cmp_lt_u32 s31, {N_U0+32}")
    a("s_cbranch_scc0 W_Q0c")
    a(f"s_add_u32 s32, s31, {0x10000 - N_U0}")
    a("v_mov_b32 v28, s32")
    a("s_branch W_QW")
    a.label("W_Q0c")
    a("s_mov_b32 s73, 0")
    a.label("W_Q0R")
    a("s_cmp_ge_u32 s73, 7")
    a("s_cbranch_scc1 W_QM")
    a("s_add_u32 s30, s74, s73")
    a("s_cmp_ge_u32 s30, 7")
    a("s_cbranch_scc0 W_Q1")
    a("s_sub_u32 s30, s30, 7")
    a.label("W_Q1")
    a("s_lshl_b32 s31, s30, 2")
    a("v_mov_b32 v28, 1")
    a("buffer_atomic_add v28, off, s[12:15], s31 offset:208 sc0 sc1")
    a("s_waitcnt vmcnt(0)")
    a("v_readfirstlane_b32 s31, v28")
    a("s_cmp_lt_u32 s30, 4")
    a("s_cbranch_scc0 W_Q4")
    a("s_cmp_ge_u32 s31, 75")
    a("s_cbranch_scc1 W_QN")
    a("s_mul_i32 s32, s31, 205")
    a("s_lshr_b32 s32, s32, 10")
    a("s_mul_i32 s33, s32, 5")
    a("s_sub_u32 s33, s31, s33")
    a("s_mul_i32 s34, s30, 5")
    a("s_add_u32 s33, s33, s34")
    a("s_branch W_QP")
    a.label("W_Q4")
    a("s_cmp_ge_u32 s31, 60")
    a("s_cbranch_scc1 W_QN")
    a("s_lshr_b32 s32, s31, 2")
    a("s_and_b32 s33, s31, 3")
    a("s_lshl_b32 s34, s30, 2")
    a("s_add_u32 s33, s33, s34")
    a("s_add_u32 s33, s33, 4")
    a.label("W_QP")
    a("s_add_u32 s32, s32, 1")
    a("s_lshl_b32 s32, s32, 5")
    a("s_add_u32 s32, s32, s33")
    a("s_add_u32 s32, s32, 0x10000")
    a("v_mov_b32 v28, s32")
    a("s_branch W_QW")
    a.label("W_QN")
    a("s_add_u32 s73, s73, 1")
    a("s_branch W_Q0")
    a.label("W_QM")
    a("v_mov_b32 v28, 1")
    a("buffer_atomic_add v28, off, s[12:15], 0 offset:192 sc0 sc1")
    a("s_waitcnt vmcnt(0)")
    a.label("W_QW")
    a("ds_write_b32 v30, v28")
    a("s_waitcnt lgkmcnt(0)")
    a("s_mov_b64 exec, -1")
    a.label("W_L2")
    a("s_barrier")
    a("ds_read_b32 v28, v30")
    a("s_waitcnt lgkmcnt(0)")
    a("v_readfirstlane_b32 s30, v28")
    if STAMP:
        a("s_mov_b32 s75, s30")
        a("s_cmp_lt_u32 s75, 0x10000")
        a("s_cbranch_scc1 W_ST2")
        a("s_sub_u32 s75, s75, 0x10000")
        a("s_add_u32 s75, s75, 4096")
        a("s_cmp_lt_u32 s75, 0x10000")
        a("s_cbranch_scc1 W_ST2")
        a("s_sub_u32 s75, s75, 0x10000")
        a("s_add_u32 s75, s75, 1024")
        a.label("W_ST2")
        a("s_memrealtime s[76:77]")
        a("s_waitcnt lgkmcnt(0)")
        a("v_mov_b32 v28, s76")
        a("s_lshl_b32 s76, s75, 3")
        a("s_add_u32 s76, s76, 0x9000000")
        a("buffer_store_dword v28, off, s[24:27], s76")
    a("s_cmp_ge_u32 s30, 0x20000")
    a("s_cbranch_scc0 W_D00")
    a("s_sub_u32 s30, s30, 0x20000")
    a(f"s_cmp_lt_u32 s30, {N_INIT}")
    a("s_cbranch_scc1 W_INIT")
    a(f"s_sub_u32 s30, s30, {N_INIT}")
    a("s_branch W_LN")
    a.label("W_D00")
    a("s_cmp_ge_u32 s30, 0x10000")
    a("s_cbranch_scc0 W_D0")
    a("s_sub_u32 s30, s30, 0x10000")
    a("s_branch W_P")
    a.label("W_D0")
    a(f"s_cmp_lt_u32 s30, {N_PK}")
    a("s_cbranch_scc1 W_PK")
    a("s_cmp_lg_u32 s78, 0")
    a("s_cbranch_scc1 W_D02")
    poll_dbg(a, [D_INIT], [f"{N_INIT}"])
    a("s_mov_b32 s78, 1")
    a.label("W_D02")
    a(f"s_cmp_lt_u32 s30, {I_F2}")
    a("s_cbranch_scc0 W_D01")
    a(f"s_sub_u32 s30, s30, {I_F1}")
    a("s_branch W_F1")
    a.label("W_D01")
    a(f"s_cmp_lt_u32 s30, {I_AG}")
    a("s_cbranch_scc0 W_D3")
    a(f"s_sub_u32 s30, s30, {I_F2}")
    a("s_branch W_F2")
    a.label("W_D3")
    a(f"s_cmp_ge_u32 s30, {I_END}")
    a("s_cbranch_scc1 W_EXIT")
    a(f"s_sub_u32 s30, s30, {I_AG}")
    a("s_lshr_b32 s31, s30, 4")
    a("s_mul_i32 s31, s31, 43691")
    a("s_lshr_b32 s31, s31, 17")
    a("s_mul_i32 s32, s31, 48")
    a("s_sub_u32 s32, s30, s32")
    a("s_mov_b32 s30, s31")
    a("s_cmp_lt_u32 s32, 16")
    a("s_cbranch_scc1 W_A")
    a("s_sub_u32 s32, s32, 16")
    a("s_branch W_G")
    gen_P(a)
    gen_A(a)
    gen_G(a)
    gen_F1(a)
    gen_F2(a)
    gen_INIT(a)
    gen_LN(a)
    gen_PK(a)
    a.label("W_EXIT")
    a("s_endpgm")
```

```python
import sys
from common import *
import k23s as k3
def main(out):
    a = Asm()
    launches = []
    descs = []
    descs.append(k3.gen_k3(a))
    launches.append(f"; @launch kernel=k23_kernel grid=({k3.K3_GRID},1,1) block=(256,1,1) lds={k3.K3_LDS}")
    hdr = "\n".join(launches) + "\n"
    s = hdr + '.amdgcn_target "amdgcn-amd-amdhsa--gfx950"\n.text\n' + a.text() + '.section .rodata,"a"\n'
    for d in descs:
        s += ".p2align 6\n" + d
    open(out, "w").write(s)
if __name__ == "__main__":
    if 'stamp' in sys.argv: k3.STAMP = True; k3.workers.STAMP = True
    if "realt" in sys.argv: k3.REALT = True
    if "forceglobal" in sys.argv: k3.ELECT_N = 40
    main(sys.argv[1])
```
